```python
import torch

def _softmax(x, axis=-1):
    return torch.softmax(x, dim=axis)

def _gelu(x):
    return torch.nn.functional.gelu(x, approximate='tanh')

def _silu(x):
    return torch.nn.functional.silu(x)

def _sigmoid(x):
    return torch.sigmoid(x)

def _layernorm(x, axis=-1, eps=1e-05):
    m = x.mean(dim=axis, keepdim=True)
    v = x.var(dim=axis, keepdim=True, unbiased=False)
    return (x - m) / torch.sqrt(v + eps)

def _scatter_add(tgt, idx, src, axis=0):
    return tgt.clone().index_add_(axis, idx, src)

def _segment_sum(src, seg, n):
    out = torch.zeros((n,) + src.shape[1:], dtype=src.dtype)
    return out.index_add_(0, seg, src)

def _pad(x, pw):
    flat = tuple((v for pair in reversed(pw) for v in pair))
    return torch.nn.functional.pad(x, flat)
kernel_name = 'adaLN_cond__linear_kernel_hedgehog__glu_gated_bilinear__prompt'

def setup_inputs():

    _w = lambda a: (lambda t: t.to(torch.bfloat16) if t.is_floating_point() else t)(torch.as_tensor(a))

    def _A_setup():
        B, S, D, H = (1, 2048, 448, 16)
        Dh = D // H
        return {'x': _w((lambda *s: torch.randn(*s, dtype=torch.bfloat16) * 0.05)(B, S, D)), 'wqkv': _w((lambda *s: torch.randn(*s, dtype=torch.bfloat16) * 0.4)(D, 3 * D)), 'w_phi': _w((lambda *s: torch.randn(*s, dtype=torch.bfloat16) * 0.4)(H, Dh, Dh) * Dh ** (-0.5)), 'wo': _w((lambda *s: torch.randn(*s, dtype=torch.bfloat16) * 0.05)(D, D))}
    _A_in = _A_setup()

    def _B_setup():
        B, S, D, F = (1, 2048, 448, 1792)
        return {'x': _w((lambda *s: torch.randn(*s, dtype=torch.bfloat16) * 0.05)(B, S, D)), 'w_gate': _w((lambda *s: torch.randn(*s, dtype=torch.bfloat16) * 1.6)(D, F) * D ** (-0.5)), 'w_up': _w((lambda *s: torch.randn(*s, dtype=torch.bfloat16) * 1.6)(D, F) * D ** (-0.5)), 'w_down': _w((lambda *s: torch.randn(*s, dtype=torch.bfloat16) * 1.6)(F, D) * F ** (-0.5))}
    _B_in = _B_setup()
    return {'A_x': _A_in['x'], 'A_wqkv': _A_in['wqkv'], 'A_w_phi': _A_in['w_phi'], 'A_wo': _A_in['wo'], 'B_x': _B_in['x'], 'B_w_gate': _B_in['w_gate'], 'B_w_up': _B_in['w_up'], 'B_w_down': _B_in['w_down'], 'c': _w((lambda *s: torch.randn(*s, dtype=torch.bfloat16) * 0.1)(1, 448) * 8.0), 'w_mod': _w((lambda *s: torch.randn(*s, dtype=torch.bfloat16) * 0.1)(448, 6 * 448) * 448 ** (-0.5) * 8.0)}

def reference(A_x, A_wqkv, A_w_phi, A_wo, B_x, B_w_gate, B_w_up, B_w_down, c, w_mod):

    def _A_ref(x, wqkv, w_phi, wo):
        B, S, D = x.shape
        H = 16
        Dh = D // H
        qkv = (lambda x, *d: x.permute(*d))((x @ wqkv).reshape(B, S, 3, H, Dh), 2, 0, 3, 1, 4)
        q, k, v = (qkv[0], qkv[1], qkv[2])
        pq = torch.einsum('bhsd,hdf->bhsf', q, w_phi)
        pk = torch.einsum('bhsd,hdf->bhsf', k, w_phi)
        phi_q = torch.concatenate([_softmax(pq, axis=-1), _softmax(-pq, axis=-1)], axis=-1)
        phi_k = torch.concatenate([_softmax(pk, axis=-1), _softmax(-pk, axis=-1)], axis=-1)
        kv = torch.einsum('bhsf,bhsd->bhfd', phi_k, v)
        z = torch.einsum('bhsf->bhf', phi_k)
        num = torch.einsum('bhqf,bhfd->bhqd', phi_q, kv)
        den = torch.einsum('bhqf,bhf->bhq', phi_q, z)[..., None] + 1e-06
        o = num / den
        return (lambda x, *d: x.permute(*d))(o, 0, 2, 1, 3).reshape(B, S, D) @ wo

    def _B_ref(x, w_gate, w_up, w_down):
        g = torch.einsum('bsd,df->bsf', x, w_gate)
        u = torch.einsum('bsd,df->bsf', x, w_up)
        h = g * u
        return torch.einsum('bsf,fd->bsd', h, w_down)
    x = A_x
    mod = (_silu(c) @ w_mod).reshape(c.shape[0], 6, 1, -1)
    sa, ca, ga, sb, cb, gb = (mod[:, 0].clone(), mod[:, 1].clone(), mod[:, 2].clone(), mod[:, 3].clone(), mod[:, 4].clone(), mod[:, 5].clone())
    h = _layernorm(x, axis=-1) * (1 + ca) + sa
    x = x + ga * _A_ref(h, A_wqkv, A_w_phi, A_wo)
    h = _layernorm(x, axis=-1) * (1 + cb) + sb
    x = x + gb * _B_ref(h, B_w_gate, B_w_up, B_w_down)
    return x
```

```python
KNAME = 'adaLN_cond__linear_kernel_hedgehog__glu_gated_bilinear__prompt_kernel'
HDR = open('adaLN_cond__linear_kernel_hedgehog__glu_gated_bilinear__prompt.s.ref').read().split('\n')[:14]

def v(i, n=1):
    return f'v{i}' if n == 1 else f'v[{i}:{i+n-1}]'
def a(i, n=1):
    return f'a{i}' if n == 1 else f'a[{i}:{i+n-1}]'
def s(i, n=1):
    return f's{i}' if n == 1 else f's[{i}:{i+n-1}]'

class Asm:
    def __init__(self):
        self.L = []
        self.kernels = []
        self.uid = 0
    def __call__(self, t):
        for l in t.split('\n'):
            l = l.strip()
            if l: self.L.append('    ' + l)
    def c(self, t): self.L.append('    ; ' + t)
    def label(self, l): self.L.append(l + ':')
    def newlabel(self, p='L'):
        self.uid += 1
        return f'{p}_{self.uid}'
    def begin_kernel(self, name):
        self.L += [f'.globl {name}', '.p2align 8', f'.type {name},@function', f'{name}:']
    def end_kernel(self, name, grid, block, lds, nvgpr, accum, nsgpr=102, launch=True):
        self.kernels.append((name, grid, block, lds, nvgpr, accum, nsgpr))
    def text(self, launches=None, single=False):
        out = list(HDR)
        if single:
            n, g, b, lds = self.kernels[0][:4]
            out.append(f'; @launch grid=({g[0]},{g[1]},{g[2]}) block=({b[0]},{b[1]},{b[2]}) lds={lds}')
        else:
            ks = {k[0]: k for k in self.kernels}
            for nm in (launches or [k[0] for k in self.kernels]):
                n, g, b, lds = ks[nm][:4]
                out.append(f'; @launch kernel={n} grid=({g[0]},{g[1]},{g[2]}) block=({b[0]},{b[1]},{b[2]}) lds={lds}')
        out += ['.amdgcn_target "amdgcn-amd-amdhsa--gfx950"', '.text']
        out += self.L
        out += ['.section .rodata,"a"']
        for (n, g, b, lds, nv, acc, ns) in self.kernels:
            out += ['.p2align 6', f'.amdhsa_kernel {n}',
                    f'  .amdhsa_next_free_vgpr {nv}', f'  .amdhsa_next_free_sgpr {ns}',
                    f'  .amdhsa_accum_offset {acc}', '  .amdhsa_group_segment_fixed_size 0',
                    '  .amdhsa_kernarg_size 104', '  .amdhsa_user_sgpr_count 2',
                    '  .amdhsa_user_sgpr_kernarg_segment_ptr 1', '  .amdhsa_system_sgpr_workgroup_id_x 1',
                    '  .amdhsa_float_denorm_mode_32 3',
                    '.end_amdhsa_kernel']
        return '\n'.join(out) + '\n'
```

```python
import re
TRANS = ('v_exp_f32','v_log_f32','v_rcp_f32','v_rsq_f32','v_sqrt_f32','v_sin_f32','v_cos_f32','v_rcp_iflag_f32')
REG = re.compile(r'^(-|abs\(|\|)*([vas])(\d+|\[(\d+):(\d+)\])')
def regs(tok):
    tok = tok.strip()
    t = tok.lstrip('-').replace('abs(', '').replace(')', '').replace('|', '')
    if t in ('vcc',): return {('s','vcc')}
    if t in ('vcc_lo', 'vcc_hi'): return {('s','vcc')}
    if t in ('exec', 'exec_lo', 'exec_hi'): return {('x','exec')}
    if t == 'm0': return {('m','m0')}
    m = re.match(r'^([vas])(\d+)$', t)
    if m: return {(m.group(1), int(m.group(2)))}
    m = re.match(r'^([vas])\[(\d+):(\d+)\]$', t)
    if m: return {(m.group(1), i) for i in range(int(m.group(2)), int(m.group(3))+1)}
    return set()
class I:
    def __init__(s, text):
        s.text = text
        t = text.split(';')[0].strip()
        t0 = t
        t = re.sub(r'\b[a-z_]+:\[[^\]]*\]', '', t).strip()
        p = t.split(None, 1)
        s.op = p[0]; rest = p[1] if len(p) > 1 else ''
        ops = [o.strip() for o in rest.split(',')] if rest else []
        if ops:
            last = ops[-1].split()
            s.mods = ' '.join(last[1:]); ops[-1] = last[0] if last else ''
        else: s.mods = ''
        s.ops = ops
        op = s.op
        s.mfma = op.startswith('v_mfma'); s.valu = op.startswith('v_') and not s.mfma
        s.ds = op.startswith('ds_'); s.vmem = op.startswith(('buffer_', 'global_', 'flat_'))
        s.salu = op.startswith('s_')
        s.dpp = '_dpp' in op or 'row_' in t0 or 'quad_perm' in t0
        s.trans = op.replace('_e32','').replace('_e64','') in TRANS
        s.dot = op.startswith('v_dot')
        s.perml = op.startswith('v_permlane')
        s.lds_dma = s.vmem and re.search(r'\blds\b', t) is not None or op.startswith('global_load_lds')
        R = [regs(o) for o in ops]
        s.w = set(); s.r = set(); s.A = s.B = s.C = set()
        if s.mfma:
            s.w = R[0]; s.A, s.B, s.C = R[1], R[2], R[3]; s.r = s.A | s.B | s.C
        elif s.valu:
            if op.startswith('v_cmp'):
                s.w = R[0]; s.r = set().union(*R[1:])
                if op.startswith('v_cmpx'): s.w |= {('x','exec')}
            elif s.perml:
                s.w = R[0] | R[1]; s.r = R[0] | R[1]
            elif op.startswith(('v_add_co', 'v_sub_co', 'v_addc_co', 'v_subb_co')):
                s.w = R[0] | R[1]; s.r = set().union(*R[2:])
            elif op == 'v_nop': pass
            else:
                s.w = R[0]; s.r = set().union(*R[1:]) if len(R) > 1 else set()
                if op.startswith(('v_fmac', 'v_dot2c', 'v_writelane', 'v_mac', 'v_pk_fmac')) or s.dpp: s.r |= R[0]
        elif s.ds:
            if op.startswith(('ds_read', 'ds_bpermute', 'ds_permute', 'ds_swizzle')): s.w = R[0]; s.r = set().union(*R[1:])
            else: s.r = set().union(*R)
        elif s.vmem:
            if s.lds_dma: s.r = set().union(*R) | {('m','m0')}
            elif '_load' in op: s.w = R[0]; s.r = set().union(*R[1:]);
            elif 'atomic' in op and 'sc0' in s.mods: s.w = R[0]; s.r = set().union(*R)
            else: s.r = set().union(*R) if R else set()
            if 'd16' in op: s.r |= R[0]
        elif s.salu:
            if op.startswith(('s_cmp', 's_bitcmp', 's_cbranch', 's_branch', 's_waitcnt', 's_barrier', 's_nop', 's_sleep', 's_setprio', 's_endpgm')): s.r = set().union(*R) if R else set()
            else:
                s.w = R[0] if R else set(); s.r = set().union(*R[1:]) if len(R) > 1 else set()
                if 'saveexec' in op: s.w |= {('x','exec')}
        s.wide_store = s.vmem and re.search(r'store_dwordx[34]', op) is not None
        s.store_data = R[0] if (s.wide_store and op.startswith('buffer')) else (R[1] if s.wide_store else set())
        s.states = 1
        if op == 's_nop': s.states = int(ops[0], 0) + 1
        s.passes = 8 if '32x32x16' in op else (4 if '16x16x32' in op else 8)
def vec(S): return {r for r in S if r[0] in 'va'}
def sg(S): return {r for r in S if r[0] == 's'}
def need(p, c):
    n = 0
    pw = p.w
    if p.valu:
        vw = vec(pw); sw = sg(pw)
        if p.dot:
            if (vw & (c.r | c.w)):
                same_c = (c.op == p.op and not (vw & set().union(*[regs(o) for o in c.ops[1:3]])))
                if not same_c: n = max(n, 3)
        if c.mfma and (vw & c.r): n = max(n, 2)
        if p.trans and c.valu and not c.trans and (vw & c.r): n = max(n, 1)
        if p.trans and (c.ds or c.vmem or c.mfma) and (vw & c.r): n = max(n, 1)
        if c.valu and c.dpp and (vw & c.r): n = max(n, 2)
        if c.perml and (vw & c.r): n = max(n, 2)
        if c.op.startswith(('v_readlane', 'v_readfirstlane')) and (vw & c.r): n = max(n, 1)
        if sw:
            if c.valu and (sw & c.r): n = max(n, 4 if c.op.startswith(('v_readlane', 'v_writelane')) else 2)
            if c.vmem and (sw & c.r): n = max(n, 5)
            if c.salu and (sw & c.r): n = max(n, 1)
            if c.op.startswith('s_cbranch_vcc') and ('s','vcc') in sw: n = max(n, 1)
        if ('x','exec') in pw:
            if c.mfma: n = max(n, 4)
            if c.dpp: n = max(n, 5)
            if c.perml or c.op.startswith(('v_readlane','v_readfirstlane','v_writelane')): n = max(n, 4)
    if p.mfma:
        big = {8: 12, 4: 8}[p.passes]; ovl = {8: 10, 4: 6}[p.passes]; war = {8: 7, 4: 3}[p.passes]
        if c.mfma:
            if pw & (c.A | c.B): n = max(n, big)
            if pw & c.C and not (c.C == pw and c.passes == p.passes): n = max(n, ovl)
            if pw & c.w and not (c.w == pw): n = max(n, ovl)
        elif (c.valu or c.ds or c.vmem) and (pw & (c.r | c.w)): n = max(n, big)
        if c.valu and (p.C & c.w): n = max(n, war)
    if p.salu and ('m','m0') in pw and c.lds_dma: n = max(n, 1)
    if p.wide_store and (p.store_data & c.w) and (c.valu or c.ds or c.vmem or c.mfma): n = max(n, 2)
    return n
def fix(lines, report=None):
    out = []; hist = []
    added = 0
    for l in lines:
        t = l.strip()
        if not t or t.startswith(';') or t.startswith('.') or t.endswith(':'):
            out.append(l); continue
        c = I(t)
        dist = 0; req = 0
        for p in reversed(hist):
            k = need(p, c)
            if k > dist: req = max(req, k - dist)
            dist += p.states
            if dist >= 20: break
        if req > 0:
            nop = f's_nop {req-1}'
            out.append('    ' + nop + '   ; auto'); hist.append(I(nop)); added += req
        out.append(l); hist.append(c)
        if len(hist) > 40: hist = hist[-30:]
    if report is not None: report.append(added)
    return out
```

```python
import sys
from asmlib import *
import hazard

EPOCH = 0x0; MODG = 0x1000; FA = 0x4000; FB = 0x5000; FC = 0x7000; FD = 0x9000
AEXT = 0x10000; STAT = 0x30000; KVP = 0x100000; OF = 0x200000; YF = 0x400000; X1F = 0x600000; HH = 0x800000
DBGA = 0x1000000; DBGB = 0x1100000
sW, sXCD, sJ, sHI, sLO = 3, 4, 5, 6, 7
X, WQKV, WPHI, WO, WG, WU, WD, CC, WMOD, OUT, WS = [44 + 4*i for i in range(11)]
def srd(b): return f's[{b}:{b+3}]'
TAG = 88
sSPIN = 95
sL2E = 96
sUP = 98
sMASK = 100
sONES = 101
sST = 16
VL = 255
SPIN_MAX = 2000000
XREG = 28672; WP1 = 114688; TBL = 151552; PHI = 12288; VFR = 40960; KVS = 151552
OFL = 118784; AXT = OFL + 28928; AXD = AXT + 1792
P1U = 57344; P2A = 114688; DA = 21632; DB = 57472

class G(Asm):
    def __init__(self, stamps=False):
        super().__init__(); self.stamps = stamps; self.nst = 0; self.stnames = []
    def stamp(self, name):
        if not self.stamps: return
        i = self.nst; self.nst += 1; self.stnames.append(name)
        assert i < 26
        self(f's_memrealtime s[14:15]\ns_waitcnt lgkmcnt(0)\ns_mov_b32 s{sST+i}, s14')
    def spin_check(self, out):
        self(f's_add_u32 s{sSPIN}, s{sSPIN}, 1\ns_cmp_gt_u32 s{sSPIN}, {SPIN_MAX}\ns_cbranch_scc1 {out}')
    def poll(self, nl, voff, soff, tag, tmp, sleep=1):
        l = self.newlabel('P'); o = self.newlabel('PX')
        self(f's_mov_b64 exec, {hex((1 << nl) - 1)}')
        self.label(l)
        self(f'buffer_load_dword v{tmp}, v{voff}, {srd(WS)}, {soff} offen sc1\ns_waitcnt vmcnt(0)\nv_cmp_ne_u32 vcc, s{tag}, v{tmp}')
        self.spin_check(o)
        self(f's_cbranch_vccz {o}')
        if sleep: self(f's_sleep {sleep}')
        self(f's_branch {l}')
        self.label(o)
        self('s_mov_b64 exec, -1')
    def flag(self, soff, tag, tmp, zero):
        self(f'v_mov_b32 v{tmp}, s{tag}\ns_mov_b64 exec, 1\nbuffer_store_dword v{tmp}, v{zero}, {srd(WS)}, {soff} offen sc1\ns_mov_b64 exec, -1')

def xhalf(A, a, b, op, t):
    A(f'v_permlane32_swap_b32 v{a}, v{b}\n{op} v{a}, v{a}, v{b}\nv_mov_b32 v{b}, v{a}\nv_permlane32_swap_b32 v{a}, v{b}')

def softmax2(A, P, EP, EM, O, T):
    mx, nm = T, T + 2
    A(f'v_max3_f32 v{mx}, v{P}, v{P+1}, v{P+2}\nv_max3_f32 v{nm}, -v{P}, -v{P+1}, -v{P+2}')
    for i in range(3, 15, 2):
        A(f'v_max3_f32 v{mx}, v{mx}, v{P+i}, v{P+i+1}\nv_max3_f32 v{nm}, v{nm}, -v{P+i}, -v{P+i+1}')
    A(f'v_max_f32 v{mx}, v{mx}, v{P+15}\nv_max_f32_e64 v{nm}, v{nm}, -v{P+15}')
    xhalf(A, mx, nm, 'v_max_f32', None)
    A(f'v_mul_f32_e64 v{mx}, -v{mx}, s{sL2E}\nv_mul_f32_e64 v{nm}, -v{nm}, s{sL2E}')
    for i in range(0, 16, 2):
        A(f'v_pk_fma_f32 {v(EP+i,2)}, {v(P+i,2)}, {s(sL2E,2)}, {v(mx,2)} op_sel_hi:[1,1,0]')
        A(f'v_pk_fma_f32 {v(EM+i,2)}, {v(P+i,2)}, {s(sL2E,2)}, {v(nm,2)} op_sel_hi:[1,1,0] neg_lo:[1,0,0] neg_hi:[1,0,0]')
    for i in range(16):
        A(f'v_exp_f32 v{EP+i}, v{EP+i}\nv_exp_f32 v{EM+i}, v{EM+i}')
    A(f's_mov_b64 exec, {s(sUP,2)}')
    for i in range(12, 16): A(f'v_mov_b32 v{EP+i}, 0\nv_mov_b32 v{EM+i}, 0')
    A('s_mov_b64 exec, -1')
    A(f'v_pk_add_f32 {v(mx,2)}, {v(EP,2)}, {v(EP+2,2)}\nv_pk_add_f32 {v(nm,2)}, {v(EM,2)}, {v(EM+2,2)}')
    for i in range(4, 16, 2):
        A(f'v_pk_add_f32 {v(mx,2)}, {v(mx,2)}, {v(EP+i,2)}\nv_pk_add_f32 {v(nm,2)}, {v(nm,2)}, {v(EM+i,2)}')
    A(f'v_add_f32 v{mx}, v{mx}, v{mx+1}\nv_add_f32 v{nm}, v{nm}, v{nm+1}')
    xhalf(A, mx, nm, 'v_add_f32', None)
    A(f'v_rcp_f32 v{mx}, v{mx}\nv_rcp_f32 v{nm}, v{nm}')
    for i in range(0, 16, 2):
        A(f'v_pk_mul_f32 {v(EP+i,2)}, {v(EP+i,2)}, {v(mx,2)} op_sel_hi:[1,0]')
        A(f'v_pk_mul_f32 {v(EM+i,2)}, {v(EM+i,2)}, {v(nm,2)} op_sel_hi:[1,0]')
    for i in range(8):
        A(f'v_cvt_pk_bf16_f32 v{O+i}, v{EP+2*i}, v{EP+2*i+1}\nv_cvt_pk_bf16_f32 v{O+8+i}, v{EM+2*i}, v{EM+2*i+1}')

def lnstats(A, sm, sq, t, want_sd=False):
    A(f'v_mul_f32 v{sm}, 0x3b124925, v{sm}\nv_mul_f32 v{sq}, 0x3b124925, v{sq}')
    A(f'v_fma_f32 v{sq}, -v{sm}, v{sm}, v{sq}\nv_max_f32 v{sq}, 0, v{sq}')
    A(f'v_cvt_pk_bf16_f32 v{t}, v{sm}, v{sq}\nv_lshlrev_b32 v{sm}, 16, v{t}\nv_and_b32 v{sq}, s{sMASK}, v{t}')
    A(f'v_add_f32 v{sq}, 0x3727c5ac, v{sq}\nv_cvt_pk_bf16_f32 v{t}, v{sq}, v{sq}\nv_and_b32 v{sq}, s{sMASK}, v{t}')
    A(f'v_sqrt_f32 v{sq}, v{sq}\nv_cvt_pk_bf16_f32 v{t}, v{sq}, v{sq}\nv_and_b32 v{t}, s{sMASK}, v{t}\nv_rcp_f32 v{sq}, v{t}')

def prologue(A):
    A('s_cmp_ge_u32 s2, 256\ns_cbranch_scc1 L_exit')
    A('s_load_dwordx16 s[16:31], s[0:1], 0\ns_load_dwordx8 s[32:39], s[0:1], 64\ns_load_dwordx2 s[40:41], s[0:1], 96')
    A(f'v_and_b32 v{VL}, 63, v0\nv_lshrrev_b32 v1, 6, v0\nv_readfirstlane_b32 s{sW}, v1')
    A(f's_and_b32 s{sXCD}, s2, 7\ns_lshr_b32 s{sJ}, s2, 3\ns_lshr_b32 s8, s{sJ}, 4\ns_lshl_b32 s{sHI}, s{sXCD}, 1\ns_add_u32 s{sHI}, s{sHI}, s8\ns_and_b32 s{sLO}, s{sJ}, 15')
    A(f's_mov_b32 s{sSPIN}, 0\ns_mov_b32 s{sL2E}, 0x3fb8aa3b\ns_mov_b32 s{sL2E+1}, 0x3fb8aa3b\ns_mov_b32 s{sUP}, 0\ns_mov_b32 s{sUP+1}, -1')
    A(f's_mov_b32 s{sMASK}, 0xffff0000\ns_mov_b32 s{sONES}, 0x3f803f80')
    sizes = {X: 1835008, WQKV: 1204224, WPHI: 25088, WO: 401408, WG: 1605632, WU: 1605632, WD: 1605632, CC: 896, WMOD: 2408448, OUT: 1835008, WS: 0x2000000}
    for b, n in sizes.items(): A(f's_mov_b32 s{b+2}, {n}\ns_mov_b32 s{b+3}, 0x00020000')
    A('v_mov_b32 v254, 0')
    A('s_waitcnt lgkmcnt(0)')
    src = {X: 16, WQKV: 18, WPHI: 20, WO: 22, WG: 26, WU: 28, WD: 30, CC: 32, WMOD: 34, OUT: 36, WS: 40}
    for b in (WS, WMOD, CC, X, WQKV, WPHI, WO, WG, WU, WD, OUT): A(f's_mov_b64 {s(b,2)}, {s(src[b],2)}')
    A(f'buffer_load_dword v253, v254, {srd(WS)}, 0 offen sc1')

def tags(A):
    A('v_readfirstlane_b32 s8, v253')
    A('s_lshl_b32 s8, s8, 4')
    for p in range(7): A(f's_add_u32 s9, s8, {p+1}\ns_mul_i32 s{TAG+p}, s9, 0x9E3779B1')

def phase0_1(A):
    A.stamp('start')
    A(f's_lshr_b32 s8, s{sJ}, 3\ns_lshl_b32 s8, s8, 3\ns_add_u32 s8, s8, s{sXCD}\ns_lshl_b32 s8, s8, 3\ns_and_b32 s9, s{sJ}, 7\ns_add_u32 s12, s8, s9')
    A(f's_mov_b32 s13, 1\ns_cmp_eq_u32 s{sW}, 0\ns_cbranch_scc1 L_gv_go')
    A(f's_mov_b32 s13, 0\ns_cmp_lg_u32 s{sW}, 1\ns_cbranch_scc1 L_gv_skip1\ns_sub_u32 s8, s12, 128\ns_cmp_ge_u32 s8, 80\ns_cbranch_scc1 L_gv_skip1')
    A('s_mov_b32 s13, 1\ns_add_u32 s12, s12, 128')
    A.label('L_gv_go')
    A(f'v_mul_u32_u24 v1, 5376, v{VL}\nv_lshlrev_b32 v2, 1, v{VL}\ns_lshl_b32 s8, s12, 4')
    for i in range(7):
        A(f'buffer_load_dwordx4 {v(8+4*i,4)}, v1, {srd(WMOD)}, s8 offen')
        if i < 6: A('s_add_u32 s8, s8, 344064')
    for i in range(7): A(f'buffer_load_ushort v{40+i}, v2, {srd(CC)}, 0 offen offset:{128*i}')
    A.label('L_gv_skip1')
    A(f'v_lshrrev_b32 v3, 3, v{VL}\nv_lshrrev_b32 v4, 4, v{VL}\nv_and_b32 v5, 7, v{VL}\nv_xor_b32 v5, v5, v4\nv_lshlrev_b32 v5, 4, v5\nv_mul_u32_u24 v3, 896, v3\nv_add_u32 v3, v3, v5\nv_xor_b32 v4, 64, v3')
    A(f's_lshl_b32 s8, s{sLO}, 2\ns_add_u32 s8, s8, s{sW}\ns_mul_i32 s8, s8, {32*896}\ns_mul_i32 s0, s{sW}, {XREG}')
    for Gx in range(7):
        for p in range(4):
            A(f's_add_u32 m0, s0, {Gx*4096+p*1024}\ns_add_u32 s10, s8, {p*8*896+128*Gx}')
            A(f'buffer_load_dwordx4 v{3+(p&1)}, {srd(X)}, s10 offen lds')
    for p in range(3):
        A(f'v_add_u32 v5, {64*p}, v{VL}\nv_mul_u32_u24 v6, 43691, v5\nv_lshrrev_b32 v6, 19, v6\nv_mul_u32_u24 v7, 12, v6\nv_sub_u32 v5, v5, v7')
        A(f'v_mul_u32_u24 v6, 2688, v6\nv_lshrrev_b32 v7, 2, v5\nv_mul_u32_u24 v7, 896, v7\nv_and_b32 v5, 3, v5\nv_lshlrev_b32 v5, 4, v5\nv_add3_u32 v{250+p}, v5, v6, v7')
    A(f's_mul_i32 s10, s{sW}, 43008\ns_mul_i32 s11, s{sHI}, 56\ns_add_u32 s42, s10, s11\ns_mul_i32 s43, s{sW}, 3072')
    for i in range(3):
        for p in range(3):
            A(f's_add_u32 m0, s43, {WP1+12288*i+1024*p}\ns_add_u32 s10, s42, {172032*i}')
            A(f'buffer_load_dwordx4 v{250+p}, {srd(WQKV)}, s10 offen lds')
    A('s_cmp_eq_u32 s13, 0\ns_cbranch_scc1 L_gv_skip2')
    for i in range(8): A(f'v_mov_b32 v{48+i}, 0')
    A('s_waitcnt vmcnt(37)')
    A.stamp('gv_loaded')
    tags(A)
    for i in range(7):
        A(f'v_lshlrev_b32 v{40+i}, 16, v{40+i}\nv_mul_f32_e64 v{56+i}, -v{40+i}, s{sL2E}\nv_exp_f32 v{56+i}, v{56+i}')
    for i in range(7): A(f'v_add_f32 v{56+i}, 1.0, v{56+i}\nv_rcp_f32 v{56+i}, v{56+i}')
    for i in range(7): A(f'v_mul_f32 v{40+i}, v{40+i}, v{56+i}\nv_cvt_pk_bf16_f32 v{40+i}, v{40+i}, v{40+i}\nv_and_b32 v{56+i}, s{sMASK}, v{40+i}\nv_lshrrev_b32 v{40+i}, 16, v{40+i}')
    for i in range(7):
        for d in range(4):
            A(f'v_dot2c_f32_bf16 v{48+2*d}, v{8+4*i+d}, v{40+i}\nv_dot2c_f32_bf16 v{49+2*d}, v{8+4*i+d}, v{56+i}')
    for i in range(4): A(f'v_permlane32_swap_b32 v{48+i}, v{52+i}')
    for i in range(4): A(f'v_add_f32 v{48+i}, v{48+i}, v{52+i}')
    for i in range(2): A(f'v_permlane16_swap_b32 v{48+i}, v{50+i}')
    for i in range(2): A(f'v_add_f32 v{48+i}, v{48+i}, v{50+i}')
    for r in (8, 4, 2, 1):
        for i in range(2): A(f'v_add_f32_dpp v{48+i}, v{48+i}, v{48+i} row_ror:{r} row_mask:0xf bank_mask:0xf')
    A('s_mov_b32 s8, 0\ns_sub_u32 s9, s12, 56\ns_cmp_lt_u32 s9, 56\ns_cselect_b32 s8, 1.0, s8\ns_sub_u32 s9, s12, 224\ns_cmp_lt_u32 s9, 56\ns_cselect_b32 s8, 1.0, s8')
    A(f'v_cvt_pk_bf16_f32 v50, v48, v49\nv_lshlrev_b32 v48, 16, v50\nv_and_b32 v49, s{sMASK}, v50\nv_add_f32 v48, s8, v48\nv_add_f32 v49, s8, v49\nv_cvt_pk_bf16_f32 v50, v48, v49')
    A(f'v_mov_b32 v51, s{TAG}\nv_lshrrev_b32 v52, 1, v{VL}\ns_lshl_b32 s8, s12, 5\ns_add_u32 s8, s8, {MODG}')
    A(f's_mov_b32 exec_lo, 0x00010001\ns_mov_b32 exec_hi, 0x00010001\nbuffer_store_dwordx2 v[50:51], v52, {srd(WS)}, s8 offen sc1\ns_mov_b64 exec, -1')
    A.stamp('gv_pub')
    A.label('L_gv_skip2')
    A(f'v_and_b32 v5, 31, v{VL}\nv_subrev_u32 v6, 4, v5\nv_cmp_gt_u32 vcc, 28, v5\nv_cndmask_b32 v5, v6, v5, vcc\nv_lshlrev_b32 v5, 1, v5\nv_lshrrev_b32 v6, 5, v{VL}')
    A(f'v_mul_u32_u24 v7, 224, v6\nv_add_u32 v5, v5, v7\nv_lshl_add_u32 v6, v6, 20, v5\ns_mul_i32 s8, s{sHI}, 1568')
    for u in range(2):
        for j in range(8):
            off = (16*u + 8*(j >> 2) + (j & 3)) * 56
            A(f'buffer_load_ushort v{224+8*u+j}, v{6 if (u==1 and j>=4) else 5}, {srd(WPHI)}, s8 offen offset:{off}')
    A(f'v_and_b32 v5, 31, v{VL}\nv_lshrrev_b32 v6, 5, v{VL}\nv_bfe_u32 v7, v{VL}, 1, 3\nv_xor_b32 v6, v6, v7\nv_lshlrev_b32 v5, 7, v5\nv_add_u32 v5, s0, v5')
    for q in range(4): A(f'v_xor_b32 v7, {2*q}, v6\nv_lshl_add_u32 v{240+q}, v7, 4, v5')
    A('s_waitcnt vmcnt(25)')
    A.stamp('x_landed')
    for ks in range(28): A(f'ds_read_b128 {v(112+4*ks,4)}, v{240+(ks&3)} offset:{4096*(ks>>2)}')
    tags(A)
    for i in range(4): A(f'v_mov_b32 v{244+i}, 0')
    for ks in range(28):
        if ks % 4 == 0: A(f's_waitcnt lgkmcnt({min(15, 24-ks)})')
        if ks == 24:
            for i in range(3, 7):
                for p in range(3):
                    A(f's_add_u32 m0, s0, {3072*(i-3)+1024*p}\ns_add_u32 s10, s42, {172032*i}')
                    A(f'buffer_load_dwordx4 v{250+p}, {srd(WQKV)}, s10 offen lds')
        for d in range(4):
            r = 112 + 4*ks + d
            A(f'v_dot2c_f32_bf16 v{244+(d&1)}, s{sONES}, v{r}\nv_dot2c_f32_bf16 v{246+(d&1)}, v{r}, v{r}')
    A('v_add_f32 v244, v244, v245\nv_add_f32 v246, v246, v247')
    xhalf(A, 244, 246, 'v_add_f32', None)
    lnstats(A, 244, 246, 245)
    A('v_mul_f32_e64 v244, -v244, v246')
    for ks in range(28):
        for d in range(4):
            r = 112 + 4*ks + d; o = 8*ks + 2*d
            if ks == 27 and d < 3:
                pass
        if ks < 27:
            for d in range(4):
                r = 112 + 4*ks + d; o = 8*ks + 2*d
                A(f'v_lshlrev_b32 v{o}, 16, v{r}\nv_and_b32 v{o+1}, s{sMASK}, v{r}')
        else:
            A(f'v_lshlrev_b32 v216, 16, v220\nv_and_b32 v217, s{sMASK}, v220\nv_lshlrev_b32 v218, 16, v221\nv_and_b32 v219, s{sMASK}, v221')
            A(f'v_lshlrev_b32 v220, 16, v222\nv_and_b32 v221, s{sMASK}, v222\nv_lshlrev_b32 v222, 16, v223\nv_and_b32 v223, s{sMASK}, v223')
        for d in range(4):
            o = 8*ks + 2*d
            A(f'v_pk_fma_f32 {v(o,2)}, {v(o,2)}, v[246:247], v[244:245] op_sel_hi:[1,0,0]')
    A.stamp('t_done')
    A('s_waitcnt vmcnt(12)')
    for i in range(8): A(f'v_lshl_or_b32 v{224+2*i}, v{225+2*i}, 16, v{224+2*i}\nv_accvgpr_write_b32 a{96+i}, v{224+2*i}')
    A(f'v_lshrrev_b32 v244, 5, v{VL}\nv_lshlrev_b32 v240, 5, v244\nv_add_u32 v240, {TBL}, v240')
    A(f'v_lshlrev_b32 v244, 3, v244\nv_bfe_u32 v245, v{VL}, 2, 2\nv_add_u32 v244, v244, v245\nv_mul_u32_u24 v244, 192, v244\nv_bfe_u32 v245, v{VL}, 4, 1\nv_lshl_add_u32 v244, v245, 5, v244')
    A(f'v_and_b32 v245, 3, v{VL}\nv_lshl_add_u32 v241, v245, 3, v244\nv_add_u32 v242, {2*XREG}, v241\nv_add_u32 v243, {WP1}, v241')
    A(f's_mul_i32 s8, s{sW}, 448\ns_add_u32 s8, s8, {MODG}\nv_lshlrev_b32 v244, 3, v{VL}\ns_mov_b32 s9, 0x05040100\ns_mov_b32 s10, 0x07060302')
    A('s_mov_b32 exec_lo, -1\ns_mov_b32 exec_hi, 0x00ffffff')
    A.label('L_s0')
    A(f'buffer_load_dwordx2 v[224:225], v244, {srd(WS)}, s8 offen sc1\nbuffer_load_dwordx2 v[226:227], v244, {srd(WS)}, s8 offen offset:1792 sc1\ns_waitcnt vmcnt(0)')
    A(f'v_xor_b32 v225, s{TAG}, v225\nv_xor_b32 v227, s{TAG}, v227\nv_or_b32 v225, v225, v227\nv_cmp_ne_u32 vcc, 0, v225')
    A.spin_check('L_s0x')
    A('s_cbranch_vccz L_s0x\ns_sleep 1\ns_branch L_s0')
    A.label('L_s0x')
    A(f'v_perm_b32 v228, v224, v226, s9\nv_perm_b32 v229, v224, v226, s10\ns_mul_i32 s8, s{sW}, 448\nv_add_u32 v244, s8, v244\nds_write_b64 v244, v[228:229] offset:{TBL}' if TBL < 65536 else
      f'v_perm_b32 v228, v224, v226, s9\nv_perm_b32 v229, v224, v226, s10\ns_mul_i32 s8, s{sW}, 448\ns_add_u32 s8, s8, {TBL}\nv_add_u32 v244, s8, v244\nds_write_b64 v244, v[228:229]')
    A('s_mov_b64 exec, -1\ns_waitcnt lgkmcnt(0)\ns_barrier')
    A.stamp('s0_done')

def wloc(ks):
    if ks < 12: return 243, 3072*ks
    w = ks & 3; slot = (ks >> 2) - 3
    if w < 2: return 241, w*XREG + 3072*slot
    return 242, (w-2)*XREG + 3072*slot

def p1_kv(A):
    WB = 48
    def reads(ks):
        tb = 224 + 8*(ks & 1)
        A(f'ds_read_b128 {v(tb,4)}, v240 offset:{64*ks}\nds_read_b128 {v(tb+4,4)}, v240 offset:{64*ks+16}')
        r, b = wloc(ks); wb = WB + 8*(ks % 3)
        for seg in (1, 2):
            for sec in range(2):
                A(f'ds_read_b64_tr_b16 {a(wb+4*(seg-1)+2*sec,2)}, v{r} offset:{b+768*sec+64*seg}')
    reads(0)
    for ks in range(28):
        if ks < 27: reads(ks+1); A('s_waitcnt lgkmcnt(6)')
        else: A('s_waitcnt lgkmcnt(0)')
        tb = 224 + 8*(ks & 1); wb = WB + 8*(ks % 3); o = 8*ks
        for hf in range(2):
            for i in range(4): A(f'v_lshlrev_b32 v{244+i}, 16, v{tb+4*hf+i}')
            for i in range(2): A(f'v_pk_fma_f32 {v(o+4*hf+2*i,2)}, {v(o+4*hf+2*i,2)}, {v(244+2*i,2)}, {v(tb+4*hf+2*i,2)}')
        for i in range(4): A(f'v_cvt_pk_bf16_f32 v{4*ks+i}, v{o+2*i}, v{o+2*i+1}')
        cK = '0' if ks == 0 else a(0,16); cV = '0' if ks == 0 else a(16,16)
        A(f'v_mfma_f32_32x32x16_bf16 {a(0,16)}, {a(wb,4)}, {v(4*ks,4)}, {cK}')
        A(f'v_mfma_f32_32x32x16_bf16 {a(16,16)}, {v(4*ks,4)}, {a(wb+4,4)}, {cV}')
    A.stamp('kv_gemm')
    for i in range(16): A(f'v_accvgpr_read_b32 v{112+i}, a{i}')
    for i in range(8): A(f'v_cvt_pk_bf16_f32 v{128+i}, v{112+2*i}, v{113+2*i}')
    A(f'v_mfma_f32_32x32x16_bf16 {v(136,16)}, {a(96,4)}, {v(128,4)}, 0\nv_mfma_f32_32x32x16_bf16 {v(136,16)}, {a(100,4)}, {v(132,4)}, {v(136,16)}')
    for i in range(16): A(f'v_accvgpr_read_b32 v{152+i}, a{16+i}')
    for i in range(8): A(f'v_cvt_pk_bf16_f32 v{168+i}, v{152+2*i}, v{153+2*i}')
    A('s_mov_b32 exec_lo, 0x10000000\ns_mov_b32 exec_hi, 0x10000000')
    for i in range(8): A(f'v_mov_b32 v{168+i}, s{sONES}')
    A(f's_mov_b64 exec, -1\ns_lshl_b32 s8, s{sW}, 11\ns_add_u32 s8, s8, {VFR}\nv_lshl_add_u32 v244, v{VL}, 4, s8')
    A(f'ds_write_b128 v244, {v(168,4)}\nds_write_b128 v244, {v(172,4)} offset:1024')
    A(f'v_and_b32 v244, 1, v{VL}\nv_bfe_u32 v245, v{VL}, 1, 1\nv_lshl_or_b32 v244, v245, 3, v244\nv_bfe_u32 v245, v{VL}, 3, 1\nv_lshl_or_b32 v244, v245, 2, v244')
    A(f'v_bfe_u32 v245, v{VL}, 2, 1\nv_lshl_or_b32 v244, v245, 1, v244\nv_lshrrev_b32 v245, 5, v{VL}\nv_xor_b32 v244, v244, v245')
    A(f'v_and_b32 v245, 31, v{VL}\nv_lshlrev_b32 v245, 7, v245\ns_lshl_b32 s8, s{sW}, 12\ns_add_u32 s8, s8, {PHI}\nv_add_u32 v245, s8, v245')
    softmax2(A, 136, 152, 176, 192, 208)
    for sg_ in range(2):
        for g in range(4):
            A(f'v_xor_b32 v246, {sg_*8+2*g}, v244\nv_lshl_add_u32 v246, v246, 3, v245\nds_write_b64 v246, {v(192+8*sg_+2*g,2)}')
    A('s_waitcnt lgkmcnt(0)\ns_barrier')
    A.stamp('phik')
    A(f's_cmp_ge_u32 s{sW}, 2\ns_cbranch_scc1 L_kv_skip')
    A(f'v_lshrrev_b32 v244, 5, v{VL}\nv_bfe_u32 v245, v{VL}, 2, 2\nv_lshl_add_u32 v246, v244, 2, v245\nv_lshlrev_b32 v246, 7, v246\nv_add_u32 v246, {PHI}, v246')
    A(f'v_lshlrev_b32 v244, 1, v244\nv_bfe_u32 v245, v{VL}, 2, 1\nv_or_b32 v244, v244, v245\nv_bfe_u32 v245, v{VL}, 3, 1\nv_lshl_or_b32 v244, v245, 3, v244')
    A(f'v_bfe_u32 v245, v{VL}, 4, 1\nv_lshlrev_b32 v245, 2, v245\nv_and_b32 v247, 3, v{VL}\nv_or_b32 v245, v245, v247\ns_lshl_b32 s8, s{sW}, 3\nv_or_b32 v245, s8, v245\nv_xor_b32 v244, v244, v245')
    A(f'v_lshl_add_u32 v245, v244, 3, v246\nv_xor_b32 v244, 4, v244\nv_lshl_add_u32 v244, v244, 3, v246\nv_lshlrev_b32 v246, 4, v{VL}')
    for tau in range(4):
        for u in range(2):
            i = tau*2 + u
            A(f'ds_read_b64_tr_b16 {v(112+4*i,2)}, v245 offset:{tau*4096+2048*u}\nds_read_b64_tr_b16 {v(114+4*i,2)}, v244 offset:{tau*4096+2048*u+1024}')
            A(f'ds_read_b128 {v(144+4*i,4)}, v246 offset:{VFR+tau*2048+u*1024}')
    for i in range(8):
        A(f's_waitcnt lgkmcnt({min(15, 21-3*i)})')
        A(f'v_mfma_f32_32x32x16_bf16 {v(176,16)}, {v(112+4*i,4)}, {v(144+4*i,4)}, {"0" if i == 0 else v(176,16)}')
    for i in range(8): A(f'v_cvt_pk_bf16_f32 v{192+i}, v{176+2*i}, v{177+2*i}')
    A(f's_lshl_b32 s8, s{sHI}, 4\ns_add_u32 s8, s8, s{sLO}\ns_lshl_b32 s8, s8, 12\ns_lshl_b32 s9, s{sW}, 11\ns_add_u32 s8, s8, s9\ns_add_u32 s8, s8, {KVP}')
    A(f'buffer_store_dwordx4 {v(192,4)}, v246, {srd(WS)}, s8 offen sc1\nbuffer_store_dwordx4 {v(196,4)}, v246, {srd(WS)}, s8 offen offset:1024 sc1')
    A(f's_lshl_b32 s8, s{sHI}, 1\ns_add_u32 s8, s8, s{sW}\ns_lshl_b32 s8, s8, 7\ns_lshl_b32 s9, s{sLO}, 2\ns_add_u32 s8, s8, s9\ns_add_u32 s8, s8, {FA}\ns_waitcnt vmcnt(0)')
    A.flag('s8', TAG+1, 244, 254)
    A.label('L_kv_skip')
    A.stamp('kv_pub')

def p1_q(A):
    WB = 48
    def reads(ks):
        r, b = wloc(ks); wb = WB + 4*(ks % 6)
        for sec in range(2): A(f'ds_read_b64_tr_b16 {a(wb+2*sec,2)}, v{r} offset:{b+768*sec}')
    for ks in range(4): reads(ks)
    for ks in range(28):
        if ks + 4 < 28: reads(ks+4)
        A(f's_waitcnt lgkmcnt({2*min(4, 27-ks)})')
        wb = WB + 4*(ks % 6)
        A(f'v_mfma_f32_32x32x16_bf16 {v(112,16)}, {a(wb,4)}, {v(4*ks,4)}, {"0" if ks == 0 else v(112,16)}')
    A('s_barrier')
    wo_dma(A); aext_dma(A)
    for i in range(8): A(f'v_cvt_pk_bf16_f32 v{128+i}, v{112+2*i}, v{113+2*i}')
    A(f'v_mfma_f32_32x32x16_bf16 {v(136,16)}, {a(96,4)}, {v(128,4)}, 0\nv_mfma_f32_32x32x16_bf16 {v(136,16)}, {a(100,4)}, {v(132,4)}, {v(136,16)}')
    softmax2(A, 136, 152, 176, 192, 208)
    A.stamp('phiq')


def lanebits(A, hl=None, nb=None, r=None, c=None):
    if hl is not None: A(f'v_lshrrev_b32 v{hl}, 5, v{VL}')
    if nb is not None: A(f'v_bfe_u32 v{nb}, v{VL}, 4, 1')
    if r is not None: A(f'v_bfe_u32 v{r}, v{VL}, 2, 2')
    if c is not None: A(f'v_and_b32 v{c}, 3, v{VL}')

def wo_dma(A):
    A(f'v_lshrrev_b32 v244, 4, v{VL}\nv_lshlrev_b32 v245, 2, v244\nv_and_b32 v246, 15, v{VL}\nv_xor_b32 v245, v245, v246\nv_mul_u32_u24 v244, 896, v244\nv_lshl_add_u32 v244, v245, 4, v244')
    A(f's_and_b32 s8, s{sLO}, 3\ns_mul_i32 s8, s8, 224\ns_mul_i32 s9, s{sW}, 3584\ns_add_u32 s8, s8, s9\ns_lshl_b32 s9, s{sW}, 10')
    for i in range(29):
        A(f's_add_u32 m0, s9, {4096*i}\ns_add_u32 s10, s8, {4*3584*i}\nbuffer_load_dwordx4 v244, {srd(WO)}, s10 offen lds')

def wo_read(A):
    lanebits(A, hl=244, nb=245, r=246, c=247)
    A(f'v_lshl_add_u32 v244, v244, 2, v246\nv_lshlrev_b32 v244, 8, v244\nv_xor_b32 v246, s{sW}, v246\nv_lshl_add_u32 v244, v246, 6, v244\nv_lshl_add_u32 v244, v245, 5, v244\nv_lshl_add_u32 v244, v247, 3, v244\nv_add_u32 v245, 57344, v244')
    for h in range(16):
        for u in range(2):
            for sec in range(2):
                off = (28*(h & 7) + 16*u + 8*sec) * 256
                A(f'ds_read_b64_tr_b16 {v(8*h+4*u+2*sec,2)}, v{244+(h>>3)} offset:{off}')
    A('s_waitcnt lgkmcnt(0)')

def aext_dma(A):
    A(f's_cmp_lg_u32 s{sW}, 3\ns_cbranch_scc1 L_ax1\ns_cmp_ge_u32 s{sHI}, 7\ns_cbranch_scc1 L_ax1')
    A(f'v_lshrrev_b32 v244, 1, v{VL}\nv_mul_u32_u24 v244, 3584, v244\nv_and_b32 v245, 1, v{VL}\nv_lshl_add_u32 v244, v245, 4, v244')
    A(f's_mul_i32 s8, s{sLO}, 224\ns_lshl_b32 s9, s{sHI}, 5\ns_add_u32 s8, s8, s9')
    for i in range(14):
        A(f's_mov_b32 m0, {OFL+1024*i}\ns_add_u32 s10, s8, {32*3584*i}\nbuffer_load_dwordx4 v244, {srd(WG)}, s10 offen lds')
        A(f's_mov_b32 m0, {OFL+14464+1024*i}\nbuffer_load_dwordx4 v244, {srd(WU)}, s10 offen lds')
    A.label('L_ax1')

def aext(A):
    A(f's_cmp_lg_u32 s{sW}, 3\ns_cbranch_scc1 L_ax2\ns_cmp_ge_u32 s{sHI}, 7\ns_cbranch_scc1 L_ax2')
    A(f'v_lshlrev_b32 v244, 3, v{VL}\nv_lshlrev_b32 v245, 2, v{VL}\nv_add_u32 v245, {AXT}, v245\ns_mov_b32 s8, {MODG+3*1792}')
    A.label('L_ax_p')
    for i in range(4):
        A(f'buffer_load_dwordx2 {v(2*i,2)}, v244, {srd(WS)}, s8 offen offset:{1792+512*i} sc1\nbuffer_load_dwordx2 {v(8+2*i,2)}, v244, {srd(WS)}, s8 offen offset:{512*i} sc1')
    A('s_waitcnt vmcnt(0)\nv_mov_b32 v16, 0')
    for i in range(8): A(f'v_xor_b32 v{2*i+1}, s{TAG}, v{2*i+1}\nv_or_b32 v16, v16, v{2*i+1}')
    A('v_cmp_ne_u32 vcc, 0, v16')
    A.spin_check('L_ax_px')
    A('s_cbranch_vccnz L_ax_p')
    A.label('L_ax_px')
    for i in range(3): A(f'ds_write_b32 v245, v{2*i} offset:{256*i}\nds_write_b32 v245, v{8+2*i} offset:{896+256*i}')
    A(f's_mov_b32 exec_hi, 0\nds_write_b32 v245, v6 offset:768\nds_write_b32 v245, v14 offset:{896+768}\ns_mov_b64 exec, -1')
    lanebits(A, hl=244, nb=245, r=246, c=247)
    A(f'v_and_b32 v16, 1, v{VL}\nv_mul_u32_u24 v16, 896, v16\nv_lshl_add_u32 v16, v244, 4, v16\nv_add_u32 v16, {AXT}, v16')
    A(f'v_lshl_add_u32 v244, v244, 3, v246\nv_lshlrev_b32 v244, 5, v244\nv_mul_u32_u24 v245, 14464, v245\nv_lshl_add_u32 v244, v247, 3, v244\nv_add_u32 v244, v244, v245\nv_add_u32 v244, {OFL}, v244')
    A('s_waitcnt lgkmcnt(0)')
    for half in range(2):
        for k in range(14):
            ks = half*14 + k
            A(f'ds_read_b64_tr_b16 {v(32+8*k,2)}, v244 offset:{512*ks}\nds_read_b64_tr_b16 {v(34+8*k,2)}, v244 offset:{512*ks+128}\nds_read_b128 {v(36+8*k,4)}, v16 offset:{32*ks}')
        A('s_waitcnt lgkmcnt(0)')
        for k in range(14):
            A(f'v_mfma_f32_32x32x16_bf16 {v(144,16)}, {v(32+8*k,4)}, {v(36+8*k,4)}, {"0" if half == 0 and k == 0 else v(144,16)}')
    A(f'v_and_b32 v16, 1, v{VL}\nv_lshlrev_b32 v16, 7, v16\nv_lshrrev_b32 v17, 5, v{VL}\nv_lshl_add_u32 v16, v17, 4, v16\nv_add_u32 v16, {AXD}, v16')
    A('s_mov_b32 exec_lo, 3\ns_mov_b32 exec_hi, 3')
    for g in range(4): A(f'ds_write_b128 v16, {v(144+4*g,4)} offset:{32*g}')
    A(f's_mov_b64 exec, -1\nv_and_b32 v16, 31, v{VL}\nv_lshlrev_b32 v16, 2, v16\nv_add_u32 v16, {AXD}, v16\ns_waitcnt lgkmcnt(0)\nds_read_b32 v18, v16\nds_read_b32 v19, v16 offset:128\ns_waitcnt lgkmcnt(0)')
    for x_, o in ((18, 20), (19, 21)):
        A(f'v_cvt_pk_bf16_f32 v24, v{x_}, v{x_}\nv_and_b32 v24, s{sMASK}, v24\nv_sub_f32 v25, v{x_}, v24\nv_cvt_pk_bf16_f32 v{o}, v24, v25')
    A(f'v_mov_b32 v22, 0\nv_mov_b32 v23, s{TAG+6}\ns_mov_b64 exec, {s(sUP,2)}\nv_mov_b32 v20, 0\nv_mov_b32 v21, 0\ns_mov_b64 exec, -1')
    A(f's_mul_i32 s8, s{sLO}, 7\ns_add_u32 s8, s8, s{sHI}\ns_lshl_b32 s8, s8, 10\ns_add_u32 s8, s8, {AEXT}\nv_lshlrev_b32 v16, 4, v{VL}\nbuffer_store_dwordx4 v[20:23], v16, {srd(WS)}, s8 offen sc1')
    A.label('L_ax2')

def p2a(A):
    A(f's_lshr_b32 s8, s{sW}, 1\ns_lshl_b32 s9, s{sHI}, 1\ns_add_u32 s8, s8, s9\ns_lshl_b32 s8, s8, 7\ns_add_u32 s8, s8, {FA}\nv_lshlrev_b32 v244, 2, v{VL}\nv_lshlrev_b32 v246, 4, v{VL}')
    A.poll(16, 244, 's8', TAG+1, 245)
    A.stamp('sa_flag')
    A(f's_lshl_b32 s8, s{sHI}, 16\ns_lshl_b32 s9, s{sW}, 10\ns_add_u32 s8, s8, s9\ns_add_u32 s8, s8, {KVP}')
    for p in range(16):
        A(f'buffer_load_dwordx4 {v(4*p,4)}, v246, {srd(WS)}, s8 offen sc1')
        if p < 15: A('s_add_u32 s8, s8, 4096')
    A('s_mov_b32 s10, 0x00003f80\ns_mov_b32 s11, 0x3f800000')
    for i in range(8): A(f'v_mov_b32 v{64+i}, 0')
    for p in range(16):
        A(f's_waitcnt vmcnt({15-p})')
        for d in range(4): A(f'v_dot2c_f32_bf16 v{64+2*d}, s10, v{4*p+d}\nv_dot2c_f32_bf16 v{65+2*d}, s11, v{4*p+d}')
    for d in range(4): A(f'v_cvt_pk_bf16_f32 v{72+d}, v{64+2*d}, v{65+2*d}')
    A(f's_lshl_b32 s8, s{sW}, 10\ns_add_u32 s8, s8, {KVS}\nv_add_u32 v244, s8, v246\nv_add_u32 v245, {KVS}, v246\nds_write_b128 v244, v[72:75]\ns_waitcnt lgkmcnt(0)\ns_barrier')
    for i in range(4): A(f'ds_read_b128 {v(76+4*i,4)}, v245 offset:{1024*i}')
    for i in range(4):
        A(f's_waitcnt lgkmcnt({3-i})\nv_mfma_f32_32x32x16_bf16 {v(96,16)}, {v(76+4*i,4)}, {v(192+4*i,4)}, {"0" if i == 0 else v(96,16)}')
    A(f's_lshl_b32 s8, s{sLO}, 2\ns_add_u32 s9, s8, s{sW}\ns_lshl_b32 s8, s9, 4\ns_add_u32 s8, s8, s{sHI}\ns_lshl_b32 s8, s8, 11\ns_add_u32 s8, s8, {OF}')
    A(f's_lshl_b32 s9, s9, 7\ns_lshl_b32 s10, s{sHI}, 2\ns_add_u32 s9, s9, s10\ns_add_u32 s9, s9, {FB}')
    A('v_mov_b32 v112, v108\nv_mov_b32 v114, v108\nv_permlane32_swap_b32 v112, v114\nv_add_f32 v114, 0x358637bd, v114\nv_rcp_f32 v114, v114')
    for i in range(8): A(f'v_pk_mul_f32 {v(96+2*i,2)}, {v(96+2*i,2)}, v[114:115] op_sel_hi:[1,0]')
    for i in range(8): A(f'v_cvt_pk_bf16_f32 v{116+i}, v{96+2*i}, v{97+2*i}')
    A(f's_mov_b64 exec, {s(sUP,2)}\nv_mov_b32 v122, 0\nv_mov_b32 v123, 0\ns_mov_b64 exec, -1')
    A(f'buffer_store_dwordx4 v[116:119], v246, {srd(WS)}, s8 offen sc1\nbuffer_store_dwordx4 v[120:123], v246, {srd(WS)}, s8 offen offset:1024 sc1\ns_waitcnt vmcnt(0)')
    A.flag('s9', TAG+2, 244, 254)
    A.stamp('o_pub')

def wd_stage(A):
    A(f's_cmp_ge_u32 s{sLO}, 14\ns_cbranch_scc1 L_wd_skip')
    A(f'v_lshrrev_b32 v244, 3, v{VL}\nv_bfe_u32 v245, v{VL}, 4, 1\nv_lshlrev_b32 v245, 2, v245\nv_and_b32 v246, 7, v{VL}\nv_xor_b32 v245, v245, v246\nv_mul_u32_u24 v244, 896, v244\nv_lshl_add_u32 v240, v245, 4, v244')
    lanebits(A, hl=244, nb=245, r=246, c=247)
    A(f'v_lshl_add_u32 v244, v244, 2, v246\nv_lshlrev_b32 v244, 7, v244\nv_lshl_add_u32 v244, v245, 5, v244\nv_lshl_add_u32 v244, v247, 3, v244\nv_add_u32 v244, s0, v244')
    A(f'v_lshrrev_b32 v246, 1, v246\nv_lshl_add_u32 v241, v246, 6, v244\nv_xor_b32 v246, 1, v246\nv_lshl_add_u32 v242, v246, 6, v244')
    A(f's_lshr_b32 s8, s{sLO}, 1\ns_lshl_b32 s8, s8, 7\ns_mul_i32 s9, s{sW}, {448*896}\ns_add_u32 s8, s8, s9')
    for rnd in range(2):
        for p in range(28):
            A(f's_add_u32 m0, s0, {1024*p}\ns_add_u32 s10, s8, {(rnd*28+p)*8*896}\nbuffer_load_dwordx4 v240, {srd(WD)}, s10 offen lds')
        A('s_waitcnt vmcnt(0)')
        for k in range(14):
            for nu in range(2):
                for sec in range(2):
                    A(f'ds_read_b64_tr_b16 {a(8*(rnd*14+k)+4*nu+2*sec,2)}, v{241+nu} offset:{(16*k+8*sec)*128}')
        A('s_waitcnt lgkmcnt(0)')
    A.label('L_wd_skip')

def w3_dma1(A):
    A(f'v_lshrrev_b32 v244, 3, v{VL}\nv_bfe_u32 v245, v{VL}, 4, 1\nv_lshlrev_b32 v245, 2, v245\nv_and_b32 v246, 7, v{VL}\nv_xor_b32 v245, v245, v246\nv_mul_u32_u24 v244, 3584, v244\nv_lshl_add_u32 v244, v245, 4, v244\nv_xor_b32 v245, 32, v244')
    A(f's_mul_i32 s8, s{sLO}, 224\ns_mul_i32 s9, s{sW}, {8*3584}\ns_add_u32 s8, s8, s9\ns_lshl_b32 s9, s{sW}, 10')
    for i in range(14):
        A(f's_add_u32 m0, s9, {4096*i}\ns_add_u32 s10, s8, {32*3584*i}\nbuffer_load_dwordx4 v244, {srd(WG)}, s10 offen lds')
        A(f's_add_u32 m0, s9, {P1U+4096*i}\nbuffer_load_dwordx4 v245, {srd(WU)}, s10 offen lds')

def w3_pat2(A):
    for p in range(3):
        A(f'v_add_u32 v244, {64*p}, v{VL}\nv_mul_u32_u24 v245, 43691, v244\nv_lshrrev_b32 v245, 18, v245\nv_mul_u32_u24 v246, 6, v245\nv_sub_u32 v244, v244, v246')
        A(f'v_mul_u32_u24 v245, 3584, v245\nv_lshl_add_u32 v{250+p}, v244, 4, v245')

def w3_dma2(A, part):
    gb, ub = (P2A, P2A + DA) if part == 0 else (0, DB)
    lab = f'L_w3d2_{part}'
    A(f's_mul_i32 s8, s{sLO}, 224\ns_mul_i32 s9, s{sW}, {32*3584}\ns_add_u32 s8, s8, s9\ns_add_u32 s8, s8, {128 + part*224*3584}\ns_mul_i32 s9, s{sW}, 3072')
    for bb in range(2):
        if bb == 1: A(f's_cmp_eq_u32 s{sW}, 3\ns_cbranch_scc1 {lab}\ns_add_u32 s8, s8, {128*3584}')
        for p in range(3):
            A(f's_add_u32 m0, s9, {gb+12288*bb+1024*p}\nbuffer_load_dwordx4 v{250+p}, {srd(WG)}, s8 offen lds')
            A(f's_add_u32 m0, s9, {ub+12288*bb+1024*p}\nbuffer_load_dwordx4 v{250+p}, {srd(WU)}, s8 offen lds')
    A.label(lab)

def modvec(A, part, ncol_s, dst, lab, voff):
    A(f's_lshl_b32 s10, s{ncol_s}, 2\ns_add_u32 s10, s10, {MODG+part*1792}')
    A.label(lab)
    for g in range(4): A(f'buffer_load_dwordx4 {v(dst+4*g,4)}, v{voff}, {srd(WS)}, s10 offen offset:{32*g} sc1')
    A('s_waitcnt vmcnt(0)')
    for g in range(8): A(f'v_xor_b32 v{dst+2*g+1}, s{TAG}, v{dst+2*g+1}')
    A(f'v_or3_b32 v{dst+1}, v{dst+1}, v{dst+3}, v{dst+5}\nv_or3_b32 v{dst+7}, v{dst+7}, v{dst+9}, v{dst+11}\nv_or3_b32 v{dst+1}, v{dst+1}, v{dst+13}, v{dst+15}\nv_or_b32 v{dst+1}, v{dst+1}, v{dst+7}\nv_cmp_ne_u32 vcc, 0, v{dst+1}')
    A.spin_check(lab + 'x')
    A(f's_cbranch_vccnz {lab}')
    A.label(lab + 'x')
    for q in range(8): A(f'v_and_b32 v{dst+2*q+1}, s{sMASK}, v{dst+2*q}\nv_lshlrev_b32 v{dst+2*q}, 16, v{dst+2*q}')

def p2b(A):
    A(f's_lshr_b32 s8, s{sLO}, 2\ns_lshl_b32 s1, s{sHI}, 2\ns_add_u32 s1, s1, s8\ns_and_b32 s8, s{sLO}, 3\ns_mul_i32 s11, s8, 112\ns_lshl_b32 s9, s{sW}, 5\ns_add_u32 s11, s11, s9')
    A(f'v_lshrrev_b32 v244, 5, v{VL}\nv_lshlrev_b32 v245, 4, v244\nv_and_b32 v246, 31, v{VL}\nv_mul_u32_u24 v246, 896, v246\nv_lshl_add_u32 v246, v244, 3, v246')
    A(f's_mul_i32 s8, s1, 28672\ns_lshl_b32 s9, s11, 1\ns_add_u32 s8, s8, s9')
    for g in range(4): A(f'buffer_load_dwordx2 {v(176+4*g,2)}, v246, {srd(X)}, s8 offen offset:{16*g}')
    modvec(A, 2, 11, 144, 'L_ga', 245)
    modvec(A, 4, 11, 160, 'L_c1b', 245)
    for g in range(4):
        b = 176 + 4*g
        A(f'v_and_b32 v{b+3}, s{sMASK}, v{b+1}\nv_lshlrev_b32 v{b+2}, 16, v{b+1}\nv_and_b32 v{b+1}, s{sMASK}, v{b}\nv_lshlrev_b32 v{b}, 16, v{b}')
    A(f's_lshl_b32 s8, s1, 7\ns_lshl_b32 s9, s{sW}, 4\ns_add_u32 s8, s8, s9\ns_add_u32 s8, s8, {FB}\nv_lshlrev_b32 v244, 2, v{VL}\nv_lshlrev_b32 v246, 4, v{VL}')
    A.poll(4, 244, 's8', TAG+2, 245)
    A.stamp('sb_flag')
    A(f's_lshl_b32 s8, s1, 15\ns_lshl_b32 s9, s{sW}, 13\ns_add_u32 s8, s8, s9\ns_add_u32 s8, s8, {OF}\ns_add_u32 s9, s9, {OFL}')
    for p in range(8):
        A(f's_add_u32 m0, s9, {1024*p}\ns_add_u32 s10, s8, {1024*p}\nbuffer_load_dwordx4 v246, {srd(WS)}, s10 offen sc1 lds')
    A(f'v_add_u32 v247, {OFL}, v246\ns_waitcnt vmcnt(0)\ns_barrier')
    A(f's_or_b32 s8, s2, s{sW}\ns_cmp_lg_u32 s8, 0\ns_cbranch_scc1 L_eb\nv_add_u32 v253, 1, v253\ns_mov_b64 exec, 1\nbuffer_store_dword v253, v254, {srd(WS)}, 0 offen sc1\ns_mov_b64 exec, -1')
    A.label('L_eb')
    def rd(k): A(f'ds_read_b128 {v(192+4*(k%8),4)}, v247 offset:{1024*k}')
    for k in range(6): rd(k)
    for k in range(32):
        if k + 6 < 32: rd(k+6)
        A(f's_waitcnt lgkmcnt({min(6, 31-k)})\nv_mfma_f32_32x32x16_bf16 {v(128,16)}, {v(4*k,4)}, {v(192+4*(k%8),4)}, {"0" if k == 0 else v(128,16)}')
    A('s_barrier')
    w3_dma2(A, 0)
    for i in range(8): A(f'v_pk_fma_f32 {v(128+2*i,2)}, {v(128+2*i,2)}, {v(144+2*i,2)}, {v(176+2*i,2)}')
    for i in range(8): A(f'v_cvt_pk_bf16_f32 v{192+i}, v{128+2*i}, v{129+2*i}')
    A('v_mov_b32 v208, 0\nv_mov_b32 v210, 0')
    for i in range(8): A(f'v_lshlrev_b32 v{128+2*i}, 16, v{192+i}\nv_and_b32 v{129+2*i}, s{sMASK}, v{192+i}')
    for i in range(8): A(f'v_pk_mul_f32 {v(128+2*i,2)}, {v(128+2*i,2)}, {v(160+2*i,2)}')
    for i in range(8): A(f'v_cvt_pk_bf16_f32 v{200+i}, v{128+2*i}, v{129+2*i}')
    A(f's_and_b32 s8, s{sLO}, 3\ns_mul_i32 s9, s8, 7\ns_lshl_b32 s10, s{sW}, 1\ns_add_u32 s9, s9, s10\ns_mul_i32 s10, s1, 28\ns_add_u32 s9, s9, s10\ns_lshl_b32 s9, s9, 10\ns_add_u32 s10, s9, {YF}\ns_add_u32 s9, s9, {X1F}')
    A(f'buffer_store_dwordx4 v[200:203], v246, {srd(WS)}, s10 offen sc1\nbuffer_store_dwordx4 v[192:195], v246, {srd(WS)}, s9 offen sc1')
    for i in range(4): A(f'v_dot2c_f32_bf16 v208, s{sONES}, v{192+i}\nv_dot2c_f32_bf16 v210, v{192+i}, v{192+i}')
    A(f's_cmp_eq_u32 s{sW}, 3\ns_cbranch_scc1 L_p2b3')
    A(f'buffer_store_dwordx4 v[204:207], v246, {srd(WS)}, s10 offen offset:1024 sc1\nbuffer_store_dwordx4 v[196:199], v246, {srd(WS)}, s9 offen offset:1024 sc1')
    for i in range(4, 8): A(f'v_dot2c_f32_bf16 v208, s{sONES}, v{192+i}\nv_dot2c_f32_bf16 v210, v{192+i}, v{192+i}')
    A.label('L_p2b3')
    A('s_nop 2')
    xhalf(A, 208, 210, 'v_add_f32', None)
    A(f'v_mov_b32 v209, v210\ns_lshl_b32 s8, s8, 2\ns_add_u32 s8, s8, s{sW}\ns_lshl_b32 s9, s1, 4\ns_add_u32 s9, s9, s8\ns_lshl_b32 s9, s9, 8\ns_add_u32 s9, s9, {STAT}\nv_lshlrev_b32 v244, 3, v{VL}')
    A(f's_mov_b32 exec_hi, 0\nbuffer_store_dwordx2 v[208:209], v244, {srd(WS)}, s9 offen sc1\ns_mov_b64 exec, -1')
    A(f's_lshl_b32 s8, s8, 2\ns_lshl_b32 s9, s1, 7\ns_add_u32 s8, s8, s9\ns_add_u32 s8, s8, {FC}\ns_waitcnt vmcnt(0)')
    A.flag('s8', TAG+3, 244, 254)
    A.stamp('y_pub')

def p3(A):
    WB = 224
    A(f's_mul_i32 s8, s{sLO}, 7168\ns_add_u32 s8, s8, {AEXT}\ns_add_u32 s9, s8, 4096\nv_lshlrev_b32 v246, 4, v{VL}')
    A.label('L_ae')
    for i in range(7): A(f'buffer_load_dwordx4 {v(4*i,4)}, v246, {srd(WS)}, s{8 if i < 4 else 9} offen offset:{1024*(i&3)} sc1')
    A('s_waitcnt vmcnt(0)\nv_mov_b32 v28, 0')
    for i in range(7): A(f'v_xor_b32 v{4*i+3}, s{TAG+6}, v{4*i+3}\nv_or_b32 v28, v28, v{4*i+3}')
    A('v_cmp_ne_u32 vcc, 0, v28')
    A.spin_check('L_aex')
    A('s_cbranch_vccnz L_ae')
    A.label('L_aex')
    for i in range(28): A(f'v_accvgpr_write_b32 a{WB+i}, v{i}')
    lanebits(A, hl=224, nb=225, r=226, c=227)
    A('v_lshl_add_u32 v224, v224, 2, v226')
    A(f'v_lshrrev_b32 v228, 1, v227\nv_lshrrev_b32 v229, 1, v226\nv_lshl_or_b32 v228, v229, 2, v228\nv_lshl_or_b32 v228, v225, 1, v228')
    A(f'v_lshlrev_b32 v229, 7, v224\nv_and_b32 v230, 1, v227\nv_lshl_add_u32 v229, v230, 3, v229\nv_mul_u32_u24 v230, {P1U}, v225\nv_add_u32 v229, v229, v230')
    for i in range(4): A(f'v_xor_b32 v230, {2*i}, v228\nv_lshl_add_u32 v{240+i}, v230, 4, v229')
    A(f'v_mul_u32_u24 v229, 96, v224\nv_lshl_add_u32 v229, v227, 3, v229\nv_mul_u32_u24 v230, {DA}, v225\nv_add_u32 v244, v229, v230\nv_add_u32 v244, {P2A}, v244\nv_mul_u32_u24 v230, {DB}, v225\nv_add_u32 v245, v229, v230')
    A(f's_lshl_b32 s1, s{sHI}, 2\ns_add_u32 s1, s1, s{sW}\ns_lshl_b32 s8, s1, 7\ns_add_u32 s8, s8, {FC}\nv_lshlrev_b32 v224, 2, v{VL}')
    A('s_barrier')
    A.poll(16, 224, 's8', TAG+3, 225)
    A.stamp('sc_flag')
    A(f'v_and_b32 v224, 31, v{VL}\nv_lshrrev_b32 v225, 5, v{VL}\nv_lshlrev_b32 v224, 3, v224\nv_lshl_add_u32 v224, v225, 11, v224\ns_lshl_b32 s8, s1, 12\ns_add_u32 s8, s8, {STAT}')
    for i in range(8): A(f'buffer_load_dwordx2 {v(112+2*i,2)}, v224, {srd(WS)}, s8 offen offset:{256*i} sc1')
    A(f's_mul_i32 s8, s1, 28672\ns_add_u32 s8, s8, {YF}')
    for ks in range(28):
        A(f'buffer_load_dwordx4 {v(4*ks,4)}, v246, {srd(WS)}, s8 offen offset:{1024*(ks&3)} sc1')
        if ks & 3 == 3 and ks < 27: A('s_add_u32 s8, s8, 4096')
    A('s_waitcnt vmcnt(28)')
    for i in range(1, 8): A(f'v_pk_add_f32 v[112:113], v[112:113], {v(112+2*i,2)}')
    A('v_mov_b32 v114, v113')
    xhalf(A, 112, 114, 'v_add_f32', None)
    lnstats(A, 112, 114, 113)
    A(f'v_mul_f32 v248, v114, v114\nv_xor_b32 v112, 0x80000000, v112\ns_mov_b32 s8, 0x07060706\nv_perm_b32 v224, v112, v112, s8\nv_perm_b32 v225, v113, v113, s8\nv_mov_b32 v226, 0\nv_mov_b32 v227, 0')
    for i in range(7): A(f'v_mfma_f32_32x32x16_bf16 {v(112+16*i,16)}, {a(WB+4*i,4)}, v[224:227], 0')
    def epi(tiles):
        for i in tiles:
            b = 112 + 16*i
            for q in range(4): A(f'v_pk_mul_f32 {v(b+2*q,2)}, {v(b+2*q,2)}, {v(b+8+2*q,2)}')
            for q in range(4): A(f'v_pk_mul_f32 {v(b+2*q,2)}, {v(b+2*q,2)}, v[248:249] op_sel_hi:[1,0]')
            for q in range(4): A(f'v_cvt_pk_bf16_f32 v{b+8+q}, v{b+2*q}, v{b+2*q+1}')
            A(f'buffer_store_dwordx4 {v(b+8,4)}, v246, {srd(WS)}, s{8 if i < 4 else 9} offen offset:{1024*(i&3)} sc1')
    seq = [(ks, i) for ks in range(28) for i in range(4)] + [(ks, i) for ks in range(28) for i in range(4, 7)]
    def rd(n):
        ks, i = seq[n]; wb = WB + 4*(n % 8)
        for sec in range(2):
            if i < 4: A(f'ds_read_b64_tr_b16 {a(wb+2*sec,2)}, v{240+i} offset:{(16*ks+8*sec)*128}')
            else: A(f'ds_read_b64_tr_b16 {a(wb+2*sec,2)}, v{244+(ks>=14)} offset:{(16*(ks%14)+8*sec)*96+32*(i-4)}')
    PD = 5
    def fd(p):
        A(f's_lshl_b32 s10, s{sHI}, 2\ns_lshr_b32 s11, s{sLO}, 2\ns_add_u32 s10, s10, s11\ns_lshl_b32 s10, s10, 7\ns_and_b32 s11, s{sLO}, 3\ns_lshl_b32 s11, s11, 2\ns_add_u32 s11, s11, s{sW}\ns_lshl_b32 s11, s11, 2\ns_add_u32 s10, s10, s11\ns_add_u32 s10, s10, {FD+8192*p}\ns_waitcnt vmcnt(0)')
        A.flag('s10', TAG+4+p, 224, 254)
    N = len(seq)
    stops = {56: 'mid1', 112: 'end1', 112+42: 'mid2'}
    issued = 0
    def nextstop(n):
        c = [x for x in stops if x > n]
        return min(c) if c else N
    for n in range(N):
        lim = nextstop(n - 1) if n not in stops else nextstop(n)
        if n in stops:
            if stops[n] == 'mid1':
                A('s_waitcnt vmcnt(0)\ns_barrier'); w3_dma2(A, 1)
            elif stops[n] == 'end1':
                A.stamp('pass1')
                A(f's_mul_i32 s8, s1, 112\ns_mul_i32 s9, s{sLO}, 7\ns_add_u32 s8, s8, s9\ns_lshl_b32 s8, s8, 10\ns_add_u32 s8, s8, {HH}\ns_add_u32 s9, s8, 4096')
                epi(range(4)); fd(0)
            elif stops[n] == 'mid2':
                A('s_waitcnt vmcnt(0)\ns_barrier')
        lim = nextstop(n) if stops.get(nextstop(n)) == 'mid2' else N
        while issued < min(n + PD + 1, lim): rd(issued); issued += 1
        ks, i = seq[n]
        if n < 56 and i == 0: A(f's_waitcnt vmcnt({27-ks})')
        A(f's_waitcnt lgkmcnt({2*(issued-1-n)})')
        A(f'v_mfma_f32_32x32x16_bf16 {v(112+16*i,16)}, {a(WB+4*(n%8),4)}, {v(4*ks,4)}, {v(112+16*i,16)}')
    A.stamp('pass2')
    epi(range(4, 7)); fd(1)
    A.stamp('hh_pub')

def p4(A):
    A(f's_barrier\ns_cmp_ge_u32 s{sLO}, 14\ns_cbranch_scc1 L_done')
    A(f's_and_b32 s12, s{sLO}, 1\ns_lshr_b32 s13, s{sLO}, 1\ns_lshl_b32 s1, s{sHI}, 2\ns_lshl_b32 s8, s12, 1\ns_add_u32 s1, s1, s8')
    A(f'v_lshrrev_b32 v244, 1, v{VL}\nv_lshlrev_b32 v244, 4, v244\nv_and_b32 v245, 1, v{VL}\nv_add_u32 v245, s8, v245\nv_lshl_add_u32 v244, v245, 2, v244')
    first = True
    for p in range(2):
        A(f's_lshl_b32 s8, s{sHI}, 2\ns_add_u32 s8, s8, s{sW}\ns_lshl_b32 s8, s8, 7\ns_add_u32 s8, s8, {FD+8192*p}')
        A.poll(8, 244, 's8', TAG+4+p, 245)
        A.stamp(f'sd{p}')
        fks = [7*mm + i for mm in range(4) for i in (range(4) if p == 0 else range(4, 7))]
        A(f's_mul_i32 s8, s1, 112\ns_mul_i32 s9, s{sW}, 28\ns_add_u32 s8, s8, s9\ns_lshl_b32 s8, s8, 10\ns_add_u32 s8, s8, {HH}')
        for n, fk in enumerate(fks):
            for rho in range(2):
                A(f's_add_u32 s10, s8, {(rho*112+fk)*1024}\nbuffer_load_dwordx4 {v(64+8*n+4*rho,4)}, v246, {srd(WS)}, s10 offen sc1')
        for n, fk in enumerate(fks):
            for rho in range(2):
                A(f's_waitcnt vmcnt({2*len(fks)-1-2*n-rho})')
                for nu in range(2):
                    d = v(16*(2*rho+nu), 16)
                    A(f'v_mfma_f32_32x32x16_bf16 {d}, {a(8*fk+4*nu,4)}, {v(64+8*n+4*rho,4)}, {"0" if (p == 0 and n == 0) else d}')
    A.stamp('p4_gemm')
    A(f's_lshr_b32 s8, s{sW}, 1\ns_add_u32 s1, s1, s8\ns_and_b32 s9, s{sW}, 1\ns_lshl_b32 s11, s13, 1\ns_add_u32 s11, s11, s9')
    A(f's_mul_i32 s8, s1, 28\ns_lshl_b32 s9, s11, 1\ns_add_u32 s8, s8, s9\ns_lshl_b32 s8, s8, 10\ns_add_u32 s8, s8, {X1F}\ns_lshl_b32 s11, s11, 5')
    A(f'buffer_load_dwordx4 v[192:195], v246, {srd(WS)}, s8 offen sc1\nbuffer_load_dwordx4 v[196:199], v246, {srd(WS)}, s8 offen offset:1024 sc1')
    A(f'v_lshrrev_b32 v244, 5, v{VL}\nv_lshlrev_b32 v245, 4, v244')
    modvec(A, 5, 11, 200, 'L_gb', 245)
    A(f's_lshl_b32 s8, s{sW}, 12\nv_add_u32 v244, s8, v246\ns_lshl_b32 s8, s{sW}, 14\nv_add_u32 v245, s8, v246')
    for tau in range(4):
        for q in range(4): A(f'ds_write_b128 v244, {v(16*tau+4*q,4)} offset:{16384*tau+1024*q}')
    A('s_waitcnt lgkmcnt(0)\ns_barrier')
    for sw in range(4):
        for q in range(4): A(f'ds_read_b128 {v(64+16*sw+4*q,4)}, v245 offset:{4096*sw+1024*q}')
    for i in range(8): A(f'v_lshlrev_b32 v{216+2*i}, 16, v{192+i}\nv_and_b32 v{217+2*i}, s{sMASK}, v{192+i}')
    A('s_waitcnt lgkmcnt(0)')
    for i in range(8):
        A(f'v_pk_add_f32 {v(64+2*i,2)}, {v(64+2*i,2)}, {v(80+2*i,2)}\nv_pk_add_f32 {v(96+2*i,2)}, {v(96+2*i,2)}, {v(112+2*i,2)}')
    for i in range(8): A(f'v_pk_add_f32 {v(64+2*i,2)}, {v(64+2*i,2)}, {v(96+2*i,2)}')
    for i in range(8): A(f'v_pk_fma_f32 {v(64+2*i,2)}, {v(64+2*i,2)}, {v(200+2*i,2)}, {v(216+2*i,2)}')
    for i in range(8): A(f'v_cvt_pk_bf16_f32 v{80+i}, v{64+2*i}, v{65+2*i}')
    A(f'v_and_b32 v244, 31, v{VL}\nv_mul_u32_u24 v244, 896, v244\nv_lshrrev_b32 v245, 5, v{VL}\nv_lshl_add_u32 v244, v245, 4, v244\ns_mul_i32 s8, s1, 28672\ns_lshl_b32 s9, s11, 1\ns_add_u32 s8, s8, s9')
    for pr in range(2):
        b = 80 + 4*pr
        A(f'v_permlane32_swap_b32 v{b}, v{b+2}\nv_permlane32_swap_b32 v{b+1}, v{b+3}')
    for pr in range(2): A(f'buffer_store_dwordx4 {v(80+4*pr,4)}, v244, {srd(OUT)}, s8 offen offset:{32*pr}')
    A.label('L_done')
    A.stamp('end')

def epilogue(A):
    if A.stamps:
        A(f's_lshl_b32 s8, s2, 2\ns_add_u32 s8, s8, s{sW}\ns_lshl_b32 s8, s8, 7\ns_add_u32 s8, s8, {DBGA}')
        A('v_mov_b32 v1, 0')
        for i in range(A.nst): A(f'v_writelane_b32 v1, s{sST+i}, {i}')
        A(f'v_lshlrev_b32 v2, 2, v{VL}\ns_mov_b32 exec_hi, 0\nbuffer_store_dword v1, v2, {srd(WS)}, s8 offen\ns_waitcnt vmcnt(0)')
    A.label('L_exit')
    A('s_endpgm')

def dump(A, reg, n, slot):
    A(f's_lshl_b32 s8, s2, 2\ns_add_u32 s8, s8, s{sW}\ns_lshl_b32 s8, s8, 13\ns_add_u32 s8, s8, {DBGB+slot*256}\nv_lshlrev_b32 v244, 2, v{VL}')
    for i in range(n): A(f'buffer_store_dword v{reg+i}, v244, {srd(WS)}, s8 offen offset:{256*i}')
    A('s_waitcnt vmcnt(0)')

def build(stop=99, stamps=False):
    A = G(stamps); A.begin_kernel(KNAME)
    prologue(A)
    phase0_1(A)
    p1_kv(A)
    p1_q(A)
    for _ in range(1):
        if stop == 1:
            dump(A, 192, 16, 0); break
        aext(A)
        p2a(A)
        if stop == 2: break
        wo_read(A)
        A('s_barrier')
        wd_stage(A)
        A('s_barrier')
        w3_dma1(A); w3_pat2(A)
        A.stamp('staged')
        p2b(A)
        if stop == 3: break
        p3(A)
        if stop == 4: break
        p4(A)
    epilogue(A)
    A.end_kernel(KNAME, (256,1,1), (256,1,1), 163840, 512, 256)
    rep = []
    A.L = hazard.fix(A.L, rep)
    return A.text(single=True), A.stnames, rep[0]

if __name__ == '__main__':
    stop = int(sys.argv[2]) if len(sys.argv) > 2 else 99
    stamps = len(sys.argv) > 3 and sys.argv[3] == '1'
    t, names, nops = build(stop, stamps)
    open(sys.argv[1], 'w').write(t)
    open(sys.argv[1] + '.stamps', 'w').write(' '.join(names))
    print('auto nop states', nops, 'lines', t.count('\n'))
```

```python
import sys
from asmlib import *
import hazard

EPOCH = 0x0; MODG = 0x1000; FA = 0x4000; FB = 0x5000; FC = 0x7000; FD = 0x9000
AEXT = 0x10000; STAT = 0x30000; KVP = 0x100000; OF = 0x200000; YF = 0x400000; X1F = 0x600000; HH = 0x800000
DBGA = 0x1000000; DBGB = 0x1100000
sW, sXCD, sJ, sHI, sLO = 3, 4, 5, 6, 7
X, WQKV, WPHI, WO, WG, WU, WD, CC, WMOD, OUT, WS = [44 + 4*i for i in range(11)]
def srd(b): return f's[{b}:{b+3}]'
TAG = 88
sSPIN = 95
sL2E = 96
sUP = 98
sMASK = 100
sONES = 101
sST = 16
VL = 255
SPIN_MAX = 2000000
XREG = 28672; WP1 = 114688; TBL = 151552; PHI = 12288; VFR = 40960; KVS = 151552
OFL = 118784; AXT = OFL + 28928; AXD = AXT + 1792
P1U = 57344; P2A = 114688; DA = 21632; DB = 57472

class G(Asm):
    def __init__(self, stamps=False):
        super().__init__(); self.stamps = stamps; self.nst = 0; self.stnames = []
    def stamp(self, name):
        if not self.stamps: return
        i = self.nst; self.nst += 1; self.stnames.append(name)
        assert i < 26
        self(f's_memrealtime s[14:15]\ns_waitcnt lgkmcnt(0)\ns_mov_b32 s{sST+i}, s14')
    def spin_check(self, out):
        self(f's_add_u32 s{sSPIN}, s{sSPIN}, 1\ns_cmp_gt_u32 s{sSPIN}, {SPIN_MAX}\ns_cbranch_scc1 {out}')
    def poll(self, nl, voff, soff, tag, tmp, sleep=1):
        l = self.newlabel('P'); o = self.newlabel('PX')
        self(f's_mov_b64 exec, {hex((1 << nl) - 1)}')
        self.label(l)
        self(f'buffer_load_dword v{tmp}, v{voff}, {srd(WS)}, {soff} offen sc1\ns_waitcnt vmcnt(0)\nv_cmp_ne_u32 vcc, s{tag}, v{tmp}')
        self.spin_check(o)
        self(f's_cbranch_vccz {o}')
        if sleep: self(f's_sleep {sleep}')
        self(f's_branch {l}')
        self.label(o)
        self('s_mov_b64 exec, -1')
    def flag(self, soff, tag, tmp, zero):
        self(f'v_mov_b32 v{tmp}, s{tag}\ns_mov_b64 exec, 1\nbuffer_store_dword v{tmp}, v{zero}, {srd(WS)}, {soff} offen sc1\ns_mov_b64 exec, -1')

def xhalf(A, a, b, op, t):
    A(f'v_permlane32_swap_b32 v{a}, v{b}\n{op} v{a}, v{a}, v{b}\nv_mov_b32 v{b}, v{a}\nv_permlane32_swap_b32 v{a}, v{b}')

def softmax2(A, P, EP, EM, O, T):
    mx, nm = T, T + 2
    A(f'v_max3_f32 v{mx}, v{P}, v{P+1}, v{P+2}\nv_max3_f32 v{nm}, -v{P}, -v{P+1}, -v{P+2}')
    for i in range(3, 15, 2):
        A(f'v_max3_f32 v{mx}, v{mx}, v{P+i}, v{P+i+1}\nv_max3_f32 v{nm}, v{nm}, -v{P+i}, -v{P+i+1}')
    A(f'v_max_f32 v{mx}, v{mx}, v{P+15}\nv_max_f32_e64 v{nm}, v{nm}, -v{P+15}')
    xhalf(A, mx, nm, 'v_max_f32', None)
    A(f'v_mul_f32_e64 v{mx}, -v{mx}, s{sL2E}\nv_mul_f32_e64 v{nm}, -v{nm}, s{sL2E}')
    for i in range(0, 16, 2):
        A(f'v_pk_fma_f32 {v(EP+i,2)}, {v(P+i,2)}, {s(sL2E,2)}, {v(mx,2)} op_sel_hi:[1,1,0]')
        A(f'v_pk_fma_f32 {v(EM+i,2)}, {v(P+i,2)}, {s(sL2E,2)}, {v(nm,2)} op_sel_hi:[1,1,0] neg_lo:[1,0,0] neg_hi:[1,0,0]')
    for i in range(16):
        A(f'v_exp_f32 v{EP+i}, v{EP+i}\nv_exp_f32 v{EM+i}, v{EM+i}')
    A(f's_mov_b64 exec, {s(sUP,2)}')
    for i in range(12, 16): A(f'v_mov_b32 v{EP+i}, 0\nv_mov_b32 v{EM+i}, 0')
    A('s_mov_b64 exec, -1')
    A(f'v_pk_add_f32 {v(mx,2)}, {v(EP,2)}, {v(EP+2,2)}\nv_pk_add_f32 {v(nm,2)}, {v(EM,2)}, {v(EM+2,2)}')
    for i in range(4, 16, 2):
        A(f'v_pk_add_f32 {v(mx,2)}, {v(mx,2)}, {v(EP+i,2)}\nv_pk_add_f32 {v(nm,2)}, {v(nm,2)}, {v(EM+i,2)}')
    A(f'v_add_f32 v{mx}, v{mx}, v{mx+1}\nv_add_f32 v{nm}, v{nm}, v{nm+1}')
    xhalf(A, mx, nm, 'v_add_f32', None)
    A(f'v_rcp_f32 v{mx}, v{mx}\nv_rcp_f32 v{nm}, v{nm}')
    for i in range(0, 16, 2):
        A(f'v_pk_mul_f32 {v(EP+i,2)}, {v(EP+i,2)}, {v(mx,2)} op_sel_hi:[1,0]')
        A(f'v_pk_mul_f32 {v(EM+i,2)}, {v(EM+i,2)}, {v(nm,2)} op_sel_hi:[1,0]')
    for i in range(8):
        A(f'v_cvt_pk_bf16_f32 v{O+i}, v{EP+2*i}, v{EP+2*i+1}\nv_cvt_pk_bf16_f32 v{O+8+i}, v{EM+2*i}, v{EM+2*i+1}')

def lnstats(A, sm, sq, t, want_sd=False):
    A(f'v_mul_f32 v{sm}, 0x3b124925, v{sm}\nv_mul_f32 v{sq}, 0x3b124925, v{sq}')
    A(f'v_fma_f32 v{sq}, -v{sm}, v{sm}, v{sq}\nv_max_f32 v{sq}, 0, v{sq}')
    A(f'v_cvt_pk_bf16_f32 v{t}, v{sm}, v{sq}\nv_lshlrev_b32 v{sm}, 16, v{t}\nv_and_b32 v{sq}, s{sMASK}, v{t}')
    A(f'v_add_f32 v{sq}, 0x3727c5ac, v{sq}\nv_cvt_pk_bf16_f32 v{t}, v{sq}, v{sq}\nv_and_b32 v{sq}, s{sMASK}, v{t}')
    A(f'v_sqrt_f32 v{sq}, v{sq}\nv_cvt_pk_bf16_f32 v{t}, v{sq}, v{sq}\nv_and_b32 v{t}, s{sMASK}, v{t}\nv_rcp_f32 v{sq}, v{t}')

def prologue(A):
    A('s_cmp_ge_u32 s2, 256\ns_cbranch_scc1 L_exit')
    A('s_load_dwordx16 s[16:31], s[0:1], 0\ns_load_dwordx8 s[32:39], s[0:1], 64\ns_load_dwordx2 s[40:41], s[0:1], 96')
    A(f'v_and_b32 v{VL}, 63, v0\nv_lshrrev_b32 v1, 6, v0\nv_readfirstlane_b32 s{sW}, v1')
    A(f's_and_b32 s{sXCD}, s2, 7\ns_lshr_b32 s{sJ}, s2, 3\ns_lshr_b32 s8, s{sJ}, 4\ns_lshl_b32 s{sHI}, s{sXCD}, 1\ns_add_u32 s{sHI}, s{sHI}, s8\ns_and_b32 s{sLO}, s{sJ}, 15')
    A(f's_mov_b32 s{sSPIN}, 0\ns_mov_b32 s{sL2E}, 0x3fb8aa3b\ns_mov_b32 s{sL2E+1}, 0x3fb8aa3b\ns_mov_b32 s{sUP}, 0\ns_mov_b32 s{sUP+1}, -1')
    A(f's_mov_b32 s{sMASK}, 0xffff0000\ns_mov_b32 s{sONES}, 0x3f803f80')
    sizes = {X: 1835008, WQKV: 1204224, WPHI: 25088, WO: 401408, WG: 1605632, WU: 1605632, WD: 1605632, CC: 896, WMOD: 2408448, OUT: 1835008, WS: 0x2000000}
    for b, n in sizes.items(): A(f's_mov_b32 s{b+2}, {n}\ns_mov_b32 s{b+3}, 0x00020000')
    A('v_mov_b32 v254, 0')
    A('s_waitcnt lgkmcnt(0)')
    src = {X: 16, WQKV: 18, WPHI: 20, WO: 22, WG: 26, WU: 28, WD: 30, CC: 32, WMOD: 34, OUT: 36, WS: 40}
    for b in (WS, WMOD, CC, X, WQKV, WPHI, WO, WG, WU, WD, OUT): A(f's_mov_b64 {s(b,2)}, {s(src[b],2)}')
    A(f'buffer_load_dword v253, v254, {srd(WS)}, 0 offen sc1')
    A('s_mov_b64 s[42:43], s[38:39]')

def tags(A):
    A('v_readfirstlane_b32 s8, v253')
    A('s_lshl_b32 s8, s8, 4')
    for p in range(7): A(f's_add_u32 s9, s8, {p+1}\ns_mul_i32 s{TAG+p}, s9, 0x9E3779B1')

def phase0_1(A):
    A.stamp('start')
    A(f's_lshr_b32 s8, s{sJ}, 3\ns_lshl_b32 s8, s8, 3\ns_add_u32 s8, s8, s{sXCD}\ns_lshl_b32 s8, s8, 3\ns_and_b32 s9, s{sJ}, 7\ns_add_u32 s12, s8, s9')
    A(f's_mov_b32 s13, 1\ns_cmp_eq_u32 s{sW}, 0\ns_cbranch_scc1 L_gv_go')
    A(f's_mov_b32 s13, 0\ns_cmp_lg_u32 s{sW}, 1\ns_cbranch_scc1 L_gv_skip1\ns_sub_u32 s8, s12, 128\ns_cmp_ge_u32 s8, 80\ns_cbranch_scc1 L_gv_skip1')
    A('s_mov_b32 s13, 1\ns_add_u32 s12, s12, 128')
    A.label('L_gv_go')
    A(f'v_mul_u32_u24 v1, 5376, v{VL}\nv_lshlrev_b32 v2, 1, v{VL}\ns_lshl_b32 s8, s12, 4')
    for i in range(7):
        A(f'buffer_load_dwordx4 {v(8+4*i,4)}, v1, {srd(WMOD)}, s8 offen')
        if i < 6: A('s_add_u32 s8, s8, 344064')
    for i in range(7): A(f'buffer_load_ushort v{40+i}, v2, {srd(CC)}, 0 offen offset:{128*i}')
    A.label('L_gv_skip1')
    A(f'v_lshrrev_b32 v3, 3, v{VL}\nv_lshrrev_b32 v4, 4, v{VL}\nv_and_b32 v5, 7, v{VL}\nv_xor_b32 v5, v5, v4\nv_lshlrev_b32 v5, 4, v5\nv_mul_u32_u24 v3, 896, v3\nv_add_u32 v3, v3, v5\nv_xor_b32 v4, 64, v3')
    A(f's_lshl_b32 s8, s{sLO}, 2\ns_add_u32 s8, s8, s{sW}\ns_mul_i32 s8, s8, {32*896}\ns_mul_i32 s0, s{sW}, {XREG}')
    for Gx in range(7):
        for p in range(4):
            A(f's_add_u32 m0, s0, {Gx*4096+p*1024}\ns_add_u32 s10, s8, {p*8*896+128*Gx}')
            A(f'buffer_load_dwordx4 v{3+(p&1)}, {srd(X)}, s10 offen lds')
    for p in range(3):
        A(f'v_add_u32 v5, {64*p}, v{VL}\nv_mul_u32_u24 v6, 43691, v5\nv_lshrrev_b32 v6, 19, v6\nv_mul_u32_u24 v7, 12, v6\nv_sub_u32 v5, v5, v7')
        A(f'v_mul_u32_u24 v6, 2688, v6\nv_lshrrev_b32 v7, 2, v5\nv_mul_u32_u24 v7, 896, v7\nv_and_b32 v5, 3, v5\nv_lshlrev_b32 v5, 4, v5\nv_add3_u32 v{250+p}, v5, v6, v7')
    A(f's_mul_i32 s10, s{sW}, 43008\ns_mul_i32 s11, s{sHI}, 56\ns_add_u32 s1, s10, s11\ns_mul_i32 s11, s{sW}, 3072')
    for i in range(3):
        for p in range(3):
            A(f's_add_u32 m0, s11, {WP1+12288*i+1024*p}\ns_add_u32 s10, s1, {172032*i}')
            A(f'buffer_load_dwordx4 v{250+p}, {srd(WQKV)}, s10 offen lds')
    A('s_cmp_eq_u32 s13, 0\ns_cbranch_scc1 L_gv_skip2')
    for i in range(8): A(f'v_mov_b32 v{48+i}, 0')
    A('s_waitcnt vmcnt(37)')
    A.stamp('gv_loaded')
    tags(A)
    for i in range(7):
        A(f'v_lshlrev_b32 v{40+i}, 16, v{40+i}\nv_mul_f32_e64 v{56+i}, -v{40+i}, s{sL2E}\nv_exp_f32 v{56+i}, v{56+i}')
    for i in range(7): A(f'v_add_f32 v{56+i}, 1.0, v{56+i}\nv_rcp_f32 v{56+i}, v{56+i}')
    for i in range(7): A(f'v_mul_f32 v{40+i}, v{40+i}, v{56+i}\nv_cvt_pk_bf16_f32 v{40+i}, v{40+i}, v{40+i}\nv_and_b32 v{56+i}, s{sMASK}, v{40+i}\nv_lshrrev_b32 v{40+i}, 16, v{40+i}')
    for i in range(7):
        for d in range(4):
            A(f'v_dot2c_f32_bf16 v{48+2*d}, v{8+4*i+d}, v{40+i}\nv_dot2c_f32_bf16 v{49+2*d}, v{8+4*i+d}, v{56+i}')
    for i in range(4): A(f'v_permlane32_swap_b32 v{48+i}, v{52+i}')
    for i in range(4): A(f'v_add_f32 v{48+i}, v{48+i}, v{52+i}')
    for i in range(2): A(f'v_permlane16_swap_b32 v{48+i}, v{50+i}')
    for i in range(2): A(f'v_add_f32 v{48+i}, v{48+i}, v{50+i}')
    for r in (8, 4, 2, 1):
        for i in range(2): A(f'v_add_f32_dpp v{48+i}, v{48+i}, v{48+i} row_ror:{r} row_mask:0xf bank_mask:0xf')
    A('s_mov_b32 s8, 0\ns_sub_u32 s9, s12, 56\ns_cmp_lt_u32 s9, 56\ns_cselect_b32 s8, 1.0, s8\ns_sub_u32 s9, s12, 224\ns_cmp_lt_u32 s9, 56\ns_cselect_b32 s8, 1.0, s8')
    A(f'v_cvt_pk_bf16_f32 v50, v48, v49\nv_lshlrev_b32 v48, 16, v50\nv_and_b32 v49, s{sMASK}, v50\nv_add_f32 v48, s8, v48\nv_add_f32 v49, s8, v49\nv_cvt_pk_bf16_f32 v50, v48, v49')
    A(f'v_mov_b32 v51, s{TAG}\nv_lshrrev_b32 v52, 1, v{VL}\ns_lshl_b32 s8, s12, 5\ns_add_u32 s8, s8, {MODG}')
    A(f's_mov_b32 exec_lo, 0x00010001\ns_mov_b32 exec_hi, 0x00010001\nbuffer_store_dwordx2 v[50:51], v52, {srd(WS)}, s8 offen sc1\ns_mov_b64 exec, -1')
    A.stamp('gv_pub')
    A.label('L_gv_skip2')
    A(f'v_and_b32 v5, 31, v{VL}\nv_subrev_u32 v6, 4, v5\nv_cmp_gt_u32 vcc, 28, v5\nv_cndmask_b32 v5, v6, v5, vcc\nv_lshlrev_b32 v5, 1, v5\nv_lshrrev_b32 v6, 5, v{VL}')
    A(f'v_mul_u32_u24 v7, 224, v6\nv_add_u32 v5, v5, v7\nv_lshl_add_u32 v6, v6, 20, v5\ns_mul_i32 s8, s{sHI}, 1568')
    for u in range(2):
        for j in range(8):
            off = (16*u + 8*(j >> 2) + (j & 3)) * 56
            A(f'buffer_load_ushort v{224+8*u+j}, v{6 if (u==1 and j>=4) else 5}, {srd(WPHI)}, s8 offen offset:{off}')
    A(f'v_and_b32 v5, 31, v{VL}\nv_lshrrev_b32 v6, 5, v{VL}\nv_bfe_u32 v7, v{VL}, 1, 3\nv_xor_b32 v6, v6, v7\nv_lshlrev_b32 v5, 7, v5\nv_add_u32 v5, s0, v5')
    for q in range(4): A(f'v_xor_b32 v7, {2*q}, v6\nv_lshl_add_u32 v{240+q}, v7, 4, v5')
    A('s_waitcnt vmcnt(25)')
    A.stamp('x_landed')
    for ks in range(28): A(f'ds_read_b128 {v(112+4*ks,4)}, v{240+(ks&3)} offset:{4096*(ks>>2)}')
    tags(A)
    for i in range(4): A(f'v_mov_b32 v{244+i}, 0')
    for ks in range(28):
        if ks % 4 == 0: A(f's_waitcnt lgkmcnt({min(15, 24-ks)})')
        if ks == 24:
            for i in range(3, 7):
                for p in range(3):
                    A(f's_add_u32 m0, s0, {3072*(i-3)+1024*p}\ns_add_u32 s10, s1, {172032*i}')
                    A(f'buffer_load_dwordx4 v{250+p}, {srd(WQKV)}, s10 offen lds')
        for d in range(4):
            r = 112 + 4*ks + d
            A(f'v_dot2c_f32_bf16 v{244+(d&1)}, s{sONES}, v{r}\nv_dot2c_f32_bf16 v{246+(d&1)}, v{r}, v{r}')
    A('v_add_f32 v244, v244, v245\nv_add_f32 v246, v246, v247')
    xhalf(A, 244, 246, 'v_add_f32', None)
    lnstats(A, 244, 246, 245)
    A('v_mul_f32_e64 v244, -v244, v246')
    for ks in range(28):
        for d in range(4):
            r = 112 + 4*ks + d; o = 8*ks + 2*d
            if ks == 27 and d < 3:
                pass
        if ks < 27:
            for d in range(4):
                r = 112 + 4*ks + d; o = 8*ks + 2*d
                A(f'v_lshlrev_b32 v{o}, 16, v{r}\nv_and_b32 v{o+1}, s{sMASK}, v{r}')
        else:
            A(f'v_lshlrev_b32 v216, 16, v220\nv_and_b32 v217, s{sMASK}, v220\nv_lshlrev_b32 v218, 16, v221\nv_and_b32 v219, s{sMASK}, v221')
            A(f'v_lshlrev_b32 v220, 16, v222\nv_and_b32 v221, s{sMASK}, v222\nv_lshlrev_b32 v222, 16, v223\nv_and_b32 v223, s{sMASK}, v223')
        for d in range(4):
            o = 8*ks + 2*d
            A(f'v_pk_fma_f32 {v(o,2)}, {v(o,2)}, v[246:247], v[244:245] op_sel_hi:[1,0,0]')
    A.stamp('t_done')
    A('s_waitcnt vmcnt(12)')
    for i in range(8): A(f'v_lshl_or_b32 v{224+2*i}, v{225+2*i}, 16, v{224+2*i}\nv_accvgpr_write_b32 a{96+i}, v{224+2*i}')
    A(f'v_lshrrev_b32 v244, 5, v{VL}\nv_lshlrev_b32 v240, 5, v244\nv_add_u32 v240, {TBL}, v240')
    A(f'v_lshlrev_b32 v244, 3, v244\nv_bfe_u32 v245, v{VL}, 2, 2\nv_add_u32 v244, v244, v245\nv_mul_u32_u24 v244, 192, v244\nv_bfe_u32 v245, v{VL}, 4, 1\nv_lshl_add_u32 v244, v245, 5, v244')
    A(f'v_and_b32 v245, 3, v{VL}\nv_lshl_add_u32 v241, v245, 3, v244\nv_add_u32 v242, {2*XREG}, v241\nv_add_u32 v243, {WP1}, v241')
    A(f's_mul_i32 s8, s{sW}, 448\ns_add_u32 s8, s8, {MODG}\nv_lshlrev_b32 v244, 3, v{VL}\ns_mov_b32 s9, 0x05040100\ns_mov_b32 s10, 0x07060302')
    A('s_mov_b32 exec_lo, -1\ns_mov_b32 exec_hi, 0x00ffffff')
    A.label('L_s0')
    A(f'buffer_load_dwordx2 v[224:225], v244, {srd(WS)}, s8 offen sc1\nbuffer_load_dwordx2 v[226:227], v244, {srd(WS)}, s8 offen offset:1792 sc1\ns_waitcnt vmcnt(0)')
    A(f'v_xor_b32 v225, s{TAG}, v225\nv_xor_b32 v227, s{TAG}, v227\nv_or_b32 v225, v225, v227\nv_cmp_ne_u32 vcc, 0, v225')
    A.spin_check('L_s0x')
    A('s_cbranch_vccz L_s0x\ns_sleep 1\ns_branch L_s0')
    A.label('L_s0x')
    A(f'v_perm_b32 v228, v224, v226, s9\nv_perm_b32 v229, v224, v226, s10\ns_mul_i32 s8, s{sW}, 448\nv_add_u32 v244, s8, v244\nds_write_b64 v244, v[228:229] offset:{TBL}' if TBL < 65536 else
      f'v_perm_b32 v228, v224, v226, s9\nv_perm_b32 v229, v224, v226, s10\ns_mul_i32 s8, s{sW}, 448\ns_add_u32 s8, s8, {TBL}\nv_add_u32 v244, s8, v244\nds_write_b64 v244, v[228:229]')
    A('s_mov_b64 exec, -1\ns_waitcnt lgkmcnt(0)\ns_barrier')
    A.stamp('s0_done')

def wloc(ks):
    if ks < 12: return 243, 3072*ks
    w = ks & 3; slot = (ks >> 2) - 3
    if w < 2: return 241, w*XREG + 3072*slot
    return 242, (w-2)*XREG + 3072*slot

def p1_kv(A):
    WB = 48
    def reads(ks):
        tb = 224 + 8*(ks & 1)
        A(f'ds_read_b128 {v(tb,4)}, v240 offset:{64*ks}\nds_read_b128 {v(tb+4,4)}, v240 offset:{64*ks+16}')
        r, b = wloc(ks); wb = WB + 8*(ks % 3)
        for seg in (1, 2):
            for sec in range(2):
                A(f'ds_read_b64_tr_b16 {a(wb+4*(seg-1)+2*sec,2)}, v{r} offset:{b+768*sec+64*seg}')
    reads(0)
    for ks in range(28):
        if ks < 27: reads(ks+1); A('s_waitcnt lgkmcnt(6)')
        else: A('s_waitcnt lgkmcnt(0)')
        tb = 224 + 8*(ks & 1); wb = WB + 8*(ks % 3); o = 8*ks
        for hf in range(2):
            for i in range(4): A(f'v_lshlrev_b32 v{244+i}, 16, v{tb+4*hf+i}')
            for i in range(2): A(f'v_pk_fma_f32 {v(o+4*hf+2*i,2)}, {v(o+4*hf+2*i,2)}, {v(244+2*i,2)}, {v(tb+4*hf+2*i,2)}')
        for i in range(4): A(f'v_cvt_pk_bf16_f32 v{4*ks+i}, v{o+2*i}, v{o+2*i+1}')
        cK = '0' if ks == 0 else a(0,16); cV = '0' if ks == 0 else a(16,16)
        A(f'v_mfma_f32_32x32x16_bf16 {a(0,16)}, {a(wb,4)}, {v(4*ks,4)}, {cK}')
        A(f'v_mfma_f32_32x32x16_bf16 {a(16,16)}, {v(4*ks,4)}, {a(wb+4,4)}, {cV}')
    A.stamp('kv_gemm')
    for i in range(16): A(f'v_accvgpr_read_b32 v{112+i}, a{i}')
    for i in range(8): A(f'v_cvt_pk_bf16_f32 v{128+i}, v{112+2*i}, v{113+2*i}')
    A(f'v_mfma_f32_32x32x16_bf16 {v(136,16)}, {a(96,4)}, {v(128,4)}, 0\nv_mfma_f32_32x32x16_bf16 {v(136,16)}, {a(100,4)}, {v(132,4)}, {v(136,16)}')
    for i in range(16): A(f'v_accvgpr_read_b32 v{152+i}, a{16+i}')
    for i in range(8): A(f'v_cvt_pk_bf16_f32 v{168+i}, v{152+2*i}, v{153+2*i}')
    A('s_mov_b32 exec_lo, 0x10000000\ns_mov_b32 exec_hi, 0x10000000')
    for i in range(8): A(f'v_mov_b32 v{168+i}, s{sONES}')
    A(f's_mov_b64 exec, -1\ns_lshl_b32 s8, s{sW}, 11\ns_add_u32 s8, s8, {VFR}\nv_lshl_add_u32 v244, v{VL}, 4, s8')
    A(f'ds_write_b128 v244, {v(168,4)}\nds_write_b128 v244, {v(172,4)} offset:1024')
    A(f'v_and_b32 v244, 1, v{VL}\nv_bfe_u32 v245, v{VL}, 1, 1\nv_lshl_or_b32 v244, v245, 3, v244\nv_bfe_u32 v245, v{VL}, 3, 1\nv_lshl_or_b32 v244, v245, 2, v244')
    A(f'v_bfe_u32 v245, v{VL}, 2, 1\nv_lshl_or_b32 v244, v245, 1, v244\nv_lshrrev_b32 v245, 5, v{VL}\nv_xor_b32 v244, v244, v245')
    A(f'v_and_b32 v245, 31, v{VL}\nv_lshlrev_b32 v245, 7, v245\ns_lshl_b32 s8, s{sW}, 12\ns_add_u32 s8, s8, {PHI}\nv_add_u32 v245, s8, v245')
    softmax2(A, 136, 152, 176, 192, 208)
    for sg_ in range(2):
        for g in range(4):
            A(f'v_xor_b32 v246, {sg_*8+2*g}, v244\nv_lshl_add_u32 v246, v246, 3, v245\nds_write_b64 v246, {v(192+8*sg_+2*g,2)}')
    A('s_waitcnt lgkmcnt(0)\ns_barrier')
    A.stamp('phik')
    A(f's_cmp_ge_u32 s{sW}, 2\ns_cbranch_scc1 L_kv_skip')
    A(f'v_lshrrev_b32 v244, 5, v{VL}\nv_bfe_u32 v245, v{VL}, 2, 2\nv_lshl_add_u32 v246, v244, 2, v245\nv_lshlrev_b32 v246, 7, v246\nv_add_u32 v246, {PHI}, v246')
    A(f'v_lshlrev_b32 v244, 1, v244\nv_bfe_u32 v245, v{VL}, 2, 1\nv_or_b32 v244, v244, v245\nv_bfe_u32 v245, v{VL}, 3, 1\nv_lshl_or_b32 v244, v245, 3, v244')
    A(f'v_bfe_u32 v245, v{VL}, 4, 1\nv_lshlrev_b32 v245, 2, v245\nv_and_b32 v247, 3, v{VL}\nv_or_b32 v245, v245, v247\ns_lshl_b32 s8, s{sW}, 3\nv_or_b32 v245, s8, v245\nv_xor_b32 v244, v244, v245')
    A(f'v_lshl_add_u32 v245, v244, 3, v246\nv_xor_b32 v244, 4, v244\nv_lshl_add_u32 v244, v244, 3, v246\nv_lshlrev_b32 v246, 4, v{VL}')
    for tau in range(4):
        for u in range(2):
            i = tau*2 + u
            A(f'ds_read_b64_tr_b16 {v(112+4*i,2)}, v245 offset:{tau*4096+2048*u}\nds_read_b64_tr_b16 {v(114+4*i,2)}, v244 offset:{tau*4096+2048*u+1024}')
            A(f'ds_read_b128 {v(144+4*i,4)}, v246 offset:{VFR+tau*2048+u*1024}')
    for i in range(8):
        A(f's_waitcnt lgkmcnt({min(15, 21-3*i)})')
        A(f'v_mfma_f32_32x32x16_bf16 {v(176,16)}, {v(112+4*i,4)}, {v(144+4*i,4)}, {"0" if i == 0 else v(176,16)}')
    for i in range(8): A(f'v_cvt_pk_bf16_f32 v{192+i}, v{176+2*i}, v{177+2*i}')
    A(f's_lshl_b32 s8, s{sHI}, 4\ns_add_u32 s8, s8, s{sLO}\ns_lshl_b32 s8, s8, 12\ns_lshl_b32 s9, s{sW}, 11\ns_add_u32 s8, s8, s9\ns_add_u32 s8, s8, {KVP}')
    A(f'buffer_store_dwordx4 {v(192,4)}, v246, {srd(WS)}, s8 offen sc1\nbuffer_store_dwordx4 {v(196,4)}, v246, {srd(WS)}, s8 offen offset:1024 sc1')
    A(f's_lshl_b32 s8, s{sHI}, 1\ns_add_u32 s8, s8, s{sW}\ns_lshl_b32 s8, s8, 7\ns_lshl_b32 s9, s{sLO}, 2\ns_add_u32 s8, s8, s9\ns_add_u32 s8, s8, {FA}\ns_waitcnt vmcnt(0)')
    A.flag('s8', TAG+1, 244, 254)
    A.label('L_kv_skip')
    A.stamp('kv_pub')

def p1_q(A):
    WB = 48
    def reads(ks):
        r, b = wloc(ks); wb = WB + 4*(ks % 6)
        for sec in range(2): A(f'ds_read_b64_tr_b16 {a(wb+2*sec,2)}, v{r} offset:{b+768*sec}')
    for ks in range(4): reads(ks)
    for ks in range(28):
        if ks + 4 < 28: reads(ks+4)
        A(f's_waitcnt lgkmcnt({2*min(4, 27-ks)})')
        wb = WB + 4*(ks % 6)
        A(f'v_mfma_f32_32x32x16_bf16 {v(112,16)}, {a(wb,4)}, {v(4*ks,4)}, {"0" if ks == 0 else v(112,16)}')
    A('s_barrier')
    wo_dma(A); aext_dma(A)
    for i in range(8): A(f'v_cvt_pk_bf16_f32 v{128+i}, v{112+2*i}, v{113+2*i}')
    A(f'v_mfma_f32_32x32x16_bf16 {v(136,16)}, {a(96,4)}, {v(128,4)}, 0\nv_mfma_f32_32x32x16_bf16 {v(136,16)}, {a(100,4)}, {v(132,4)}, {v(136,16)}')
    softmax2(A, 136, 152, 176, 192, 208)
    A.stamp('phiq')


def lanebits(A, hl=None, nb=None, r=None, c=None):
    if hl is not None: A(f'v_lshrrev_b32 v{hl}, 5, v{VL}')
    if nb is not None: A(f'v_bfe_u32 v{nb}, v{VL}, 4, 1')
    if r is not None: A(f'v_bfe_u32 v{r}, v{VL}, 2, 2')
    if c is not None: A(f'v_and_b32 v{c}, 3, v{VL}')

def wo_dma(A):
    A(f'v_lshrrev_b32 v244, 4, v{VL}\nv_lshlrev_b32 v245, 2, v244\nv_and_b32 v246, 15, v{VL}\nv_xor_b32 v245, v245, v246\nv_mul_u32_u24 v244, 896, v244\nv_lshl_add_u32 v244, v245, 4, v244')
    A(f's_and_b32 s8, s{sLO}, 3\ns_mul_i32 s8, s8, 224\ns_mul_i32 s9, s{sW}, 3584\ns_add_u32 s8, s8, s9\ns_lshl_b32 s9, s{sW}, 10')
    for i in range(29):
        A(f's_add_u32 m0, s9, {4096*i}\ns_add_u32 s10, s8, {4*3584*i}\nbuffer_load_dwordx4 v244, {srd(WO)}, s10 offen lds')

def wo_read(A):
    lanebits(A, hl=244, nb=245, r=246, c=247)
    A(f'v_lshl_add_u32 v244, v244, 2, v246\nv_lshlrev_b32 v244, 8, v244\nv_xor_b32 v246, s{sW}, v246\nv_lshl_add_u32 v244, v246, 6, v244\nv_lshl_add_u32 v244, v245, 5, v244\nv_lshl_add_u32 v244, v247, 3, v244\nv_add_u32 v245, 57344, v244')
    for h in range(16):
        for u in range(2):
            for sec in range(2):
                off = (28*(h & 7) + 16*u + 8*sec) * 256
                A(f'ds_read_b64_tr_b16 {v(8*h+4*u+2*sec,2)}, v{244+(h>>3)} offset:{off}')
    A('s_waitcnt lgkmcnt(0)')

def aext_dma(A):
    A(f's_cmp_lg_u32 s{sW}, 3\ns_cbranch_scc1 L_ax1\ns_cmp_ge_u32 s{sHI}, 7\ns_cbranch_scc1 L_ax1')
    A(f'v_lshrrev_b32 v244, 1, v{VL}\nv_mul_u32_u24 v244, 3584, v244\nv_and_b32 v245, 1, v{VL}\nv_lshl_add_u32 v244, v245, 4, v244')
    A(f's_mul_i32 s8, s{sLO}, 224\ns_lshl_b32 s9, s{sHI}, 5\ns_add_u32 s8, s8, s9')
    for i in range(14):
        A(f's_mov_b32 m0, {OFL+1024*i}\ns_add_u32 s10, s8, {32*3584*i}\nbuffer_load_dwordx4 v244, {srd(WG)}, s10 offen lds')
        A(f's_mov_b32 m0, {OFL+14464+1024*i}\nbuffer_load_dwordx4 v244, {srd(WU)}, s10 offen lds')
    A.label('L_ax1')

def aext(A):
    A(f's_cmp_lg_u32 s{sW}, 3\ns_cbranch_scc1 L_ax2\ns_cmp_ge_u32 s{sHI}, 7\ns_cbranch_scc1 L_ax2')
    A(f'v_lshlrev_b32 v244, 3, v{VL}\nv_lshlrev_b32 v245, 2, v{VL}\nv_add_u32 v245, {AXT}, v245\ns_mov_b32 s8, {MODG+3*1792}')
    A.label('L_ax_p')
    for i in range(4):
        A(f'buffer_load_dwordx2 {v(2*i,2)}, v244, {srd(WS)}, s8 offen offset:{1792+512*i} sc1\nbuffer_load_dwordx2 {v(8+2*i,2)}, v244, {srd(WS)}, s8 offen offset:{512*i} sc1')
    A('s_waitcnt vmcnt(0)\nv_mov_b32 v16, 0')
    for i in range(8): A(f'v_xor_b32 v{2*i+1}, s{TAG}, v{2*i+1}\nv_or_b32 v16, v16, v{2*i+1}')
    A('v_cmp_ne_u32 vcc, 0, v16')
    A.spin_check('L_ax_px')
    A('s_cbranch_vccnz L_ax_p')
    A.label('L_ax_px')
    for i in range(3): A(f'ds_write_b32 v245, v{2*i} offset:{256*i}\nds_write_b32 v245, v{8+2*i} offset:{896+256*i}')
    A(f's_mov_b32 exec_hi, 0\nds_write_b32 v245, v6 offset:768\nds_write_b32 v245, v14 offset:{896+768}\ns_mov_b64 exec, -1')
    lanebits(A, hl=244, nb=245, r=246, c=247)
    A(f'v_and_b32 v16, 1, v{VL}\nv_mul_u32_u24 v16, 896, v16\nv_lshl_add_u32 v16, v244, 4, v16\nv_add_u32 v16, {AXT}, v16')
    A(f'v_lshl_add_u32 v244, v244, 3, v246\nv_lshlrev_b32 v244, 5, v244\nv_mul_u32_u24 v245, 14464, v245\nv_lshl_add_u32 v244, v247, 3, v244\nv_add_u32 v244, v244, v245\nv_add_u32 v244, {OFL}, v244')
    A('s_waitcnt lgkmcnt(0)')
    for half in range(2):
        for k in range(14):
            ks = half*14 + k
            A(f'ds_read_b64_tr_b16 {v(32+8*k,2)}, v244 offset:{512*ks}\nds_read_b64_tr_b16 {v(34+8*k,2)}, v244 offset:{512*ks+128}\nds_read_b128 {v(36+8*k,4)}, v16 offset:{32*ks}')
        A('s_waitcnt lgkmcnt(0)')
        for k in range(14):
            A(f'v_mfma_f32_32x32x16_bf16 {v(144,16)}, {v(32+8*k,4)}, {v(36+8*k,4)}, {"0" if half == 0 and k == 0 else v(144,16)}')
    A(f'v_and_b32 v16, 1, v{VL}\nv_lshlrev_b32 v16, 7, v16\nv_lshrrev_b32 v17, 5, v{VL}\nv_lshl_add_u32 v16, v17, 4, v16\nv_add_u32 v16, {AXD}, v16')
    A('s_mov_b32 exec_lo, 3\ns_mov_b32 exec_hi, 3')
    for g in range(4): A(f'ds_write_b128 v16, {v(144+4*g,4)} offset:{32*g}')
    A(f's_mov_b64 exec, -1\nv_and_b32 v16, 31, v{VL}\nv_lshlrev_b32 v16, 2, v16\nv_add_u32 v16, {AXD}, v16\ns_waitcnt lgkmcnt(0)\nds_read_b32 v18, v16\nds_read_b32 v19, v16 offset:128\ns_waitcnt lgkmcnt(0)')
    for x_, o in ((18, 20), (19, 21)):
        A(f'v_cvt_pk_bf16_f32 v24, v{x_}, v{x_}\nv_and_b32 v24, s{sMASK}, v24\nv_sub_f32 v25, v{x_}, v24\nv_cvt_pk_bf16_f32 v{o}, v24, v25')
    A(f'v_mov_b32 v22, 0\nv_mov_b32 v23, s{TAG+6}\ns_mov_b64 exec, {s(sUP,2)}\nv_mov_b32 v20, 0\nv_mov_b32 v21, 0\ns_mov_b64 exec, -1')
    A(f's_mul_i32 s8, s{sLO}, 7\ns_add_u32 s8, s8, s{sHI}\ns_lshl_b32 s8, s8, 10\ns_add_u32 s8, s8, {AEXT}\nv_lshlrev_b32 v16, 4, v{VL}\nbuffer_store_dwordx4 v[20:23], v16, {srd(WS)}, s8 offen sc1')
    A.label('L_ax2')

def p2a(A):
    A(f's_lshr_b32 s8, s{sW}, 1\ns_lshl_b32 s9, s{sHI}, 1\ns_add_u32 s8, s8, s9\ns_lshl_b32 s8, s8, 7\ns_add_u32 s8, s8, {FA}\nv_lshlrev_b32 v244, 2, v{VL}\nv_lshlrev_b32 v246, 4, v{VL}')
    A.poll(16, 244, 's8', TAG+1, 245)
    A.stamp('sa_flag')
    A(f's_lshl_b32 s8, s{sHI}, 16\ns_lshl_b32 s9, s{sW}, 10\ns_add_u32 s8, s8, s9\ns_add_u32 s8, s8, {KVP}')
    for p in range(16):
        A(f'buffer_load_dwordx4 {v(4*p,4)}, v246, {srd(WS)}, s8 offen sc1')
        if p < 15: A('s_add_u32 s8, s8, 4096')
    A('s_mov_b32 s10, 0x00003f80\ns_mov_b32 s11, 0x3f800000')
    for i in range(8): A(f'v_mov_b32 v{64+i}, 0')
    for p in range(16):
        A(f's_waitcnt vmcnt({15-p})')
        for d in range(4): A(f'v_dot2c_f32_bf16 v{64+2*d}, s10, v{4*p+d}\nv_dot2c_f32_bf16 v{65+2*d}, s11, v{4*p+d}')
    for d in range(4): A(f'v_cvt_pk_bf16_f32 v{72+d}, v{64+2*d}, v{65+2*d}')
    A(f's_lshl_b32 s8, s{sW}, 10\ns_add_u32 s8, s8, {KVS}\nv_add_u32 v244, s8, v246\nv_add_u32 v245, {KVS}, v246\nds_write_b128 v244, v[72:75]\ns_waitcnt lgkmcnt(0)\ns_barrier')
    for i in range(4): A(f'ds_read_b128 {v(76+4*i,4)}, v245 offset:{1024*i}')
    for i in range(4):
        A(f's_waitcnt lgkmcnt({3-i})\nv_mfma_f32_32x32x16_bf16 {v(96,16)}, {v(76+4*i,4)}, {v(192+4*i,4)}, {"0" if i == 0 else v(96,16)}')
    A(f's_lshl_b32 s8, s{sLO}, 2\ns_add_u32 s9, s8, s{sW}\ns_lshl_b32 s8, s9, 4\ns_add_u32 s8, s8, s{sHI}\ns_lshl_b32 s8, s8, 11\ns_add_u32 s8, s8, {OF}')
    A(f's_lshl_b32 s9, s9, 7\ns_lshl_b32 s10, s{sHI}, 2\ns_add_u32 s9, s9, s10\ns_add_u32 s9, s9, {FB}')
    A('v_mov_b32 v112, v108\nv_mov_b32 v114, v108\nv_permlane32_swap_b32 v112, v114\nv_add_f32 v114, 0x358637bd, v114\nv_rcp_f32 v114, v114')
    for i in range(8): A(f'v_pk_mul_f32 {v(96+2*i,2)}, {v(96+2*i,2)}, v[114:115] op_sel_hi:[1,0]')
    for i in range(8): A(f'v_cvt_pk_bf16_f32 v{116+i}, v{96+2*i}, v{97+2*i}')
    A(f's_mov_b64 exec, {s(sUP,2)}\nv_mov_b32 v122, 0\nv_mov_b32 v123, 0\ns_mov_b64 exec, -1')
    A(f'buffer_store_dwordx4 v[116:119], v246, {srd(WS)}, s8 offen sc1\nbuffer_store_dwordx4 v[120:123], v246, {srd(WS)}, s8 offen offset:1024 sc1\ns_waitcnt vmcnt(0)')
    A.flag('s9', TAG+2, 244, 254)
    A.stamp('o_pub')

def wd_stage(A):
    A(f's_cmp_ge_u32 s{sLO}, 14\ns_cbranch_scc1 L_wd_skip')
    A(f'v_lshrrev_b32 v244, 3, v{VL}\nv_bfe_u32 v245, v{VL}, 4, 1\nv_lshlrev_b32 v245, 2, v245\nv_and_b32 v246, 7, v{VL}\nv_xor_b32 v245, v245, v246\nv_mul_u32_u24 v244, 896, v244\nv_lshl_add_u32 v240, v245, 4, v244')
    lanebits(A, hl=244, nb=245, r=246, c=247)
    A(f'v_lshl_add_u32 v244, v244, 2, v246\nv_lshlrev_b32 v244, 7, v244\nv_lshl_add_u32 v244, v245, 5, v244\nv_lshl_add_u32 v244, v247, 3, v244\nv_add_u32 v244, s0, v244')
    A(f'v_lshrrev_b32 v246, 1, v246\nv_lshl_add_u32 v241, v246, 6, v244\nv_xor_b32 v246, 1, v246\nv_lshl_add_u32 v242, v246, 6, v244')
    A(f's_lshr_b32 s8, s{sLO}, 1\ns_lshl_b32 s8, s8, 7\ns_mul_i32 s9, s{sW}, {448*896}\ns_add_u32 s8, s8, s9')
    for rnd in range(2):
        for p in range(28):
            A(f's_add_u32 m0, s0, {1024*p}\ns_add_u32 s10, s8, {(rnd*28+p)*8*896}\nbuffer_load_dwordx4 v240, {srd(WD)}, s10 offen lds')
        A('s_waitcnt vmcnt(0)')
        for k in range(14):
            for nu in range(2):
                for sec in range(2):
                    A(f'ds_read_b64_tr_b16 {a(8*(rnd*14+k)+4*nu+2*sec,2)}, v{241+nu} offset:{(16*k+8*sec)*128}')
        A('s_waitcnt lgkmcnt(0)')
    A.label('L_wd_skip')

def w3_dma1(A):
    A(f'v_lshrrev_b32 v244, 3, v{VL}\nv_bfe_u32 v245, v{VL}, 4, 1\nv_lshlrev_b32 v245, 2, v245\nv_and_b32 v246, 7, v{VL}\nv_xor_b32 v245, v245, v246\nv_mul_u32_u24 v244, 3584, v244\nv_lshl_add_u32 v244, v245, 4, v244\nv_xor_b32 v245, 32, v244')
    A(f's_mul_i32 s8, s{sLO}, 224\ns_mul_i32 s9, s{sW}, {8*3584}\ns_add_u32 s8, s8, s9\ns_lshl_b32 s9, s{sW}, 10')
    for i in range(14):
        A(f's_add_u32 m0, s9, {4096*i}\ns_add_u32 s10, s8, {32*3584*i}\nbuffer_load_dwordx4 v244, {srd(WG)}, s10 offen lds')
        A(f's_add_u32 m0, s9, {P1U+4096*i}\nbuffer_load_dwordx4 v245, {srd(WU)}, s10 offen lds')

def w3_pat2(A):
    for p in range(3):
        A(f'v_add_u32 v244, {64*p}, v{VL}\nv_mul_u32_u24 v245, 43691, v244\nv_lshrrev_b32 v245, 18, v245\nv_mul_u32_u24 v246, 6, v245\nv_sub_u32 v244, v244, v246')
        A(f'v_mul_u32_u24 v245, 3584, v245\nv_lshl_add_u32 v{250+p}, v244, 4, v245')

def w3_dma2(A, part):
    gb, ub = (P2A, P2A + DA) if part == 0 else (0, DB)
    lab = f'L_w3d2_{part}'
    A(f's_mul_i32 s8, s{sLO}, 224\ns_mul_i32 s9, s{sW}, {32*3584}\ns_add_u32 s8, s8, s9\ns_add_u32 s8, s8, {128 + part*224*3584}\ns_mul_i32 s9, s{sW}, 3072')
    for bb in range(2):
        if bb == 1: A(f's_cmp_eq_u32 s{sW}, 3\ns_cbranch_scc1 {lab}\ns_add_u32 s8, s8, {128*3584}')
        for p in range(3):
            A(f's_add_u32 m0, s9, {gb+12288*bb+1024*p}\nbuffer_load_dwordx4 v{250+p}, {srd(WG)}, s8 offen lds')
            A(f's_add_u32 m0, s9, {ub+12288*bb+1024*p}\nbuffer_load_dwordx4 v{250+p}, {srd(WU)}, s8 offen lds')
    A.label(lab)

def modvec(A, part, ncol_s, dst, lab, voff):
    A(f's_lshl_b32 s10, s{ncol_s}, 2\ns_add_u32 s10, s10, {MODG+part*1792}')
    A.label(lab)
    for g in range(4): A(f'buffer_load_dwordx4 {v(dst+4*g,4)}, v{voff}, {srd(WS)}, s10 offen offset:{32*g} sc1')
    A('s_waitcnt vmcnt(0)')
    for g in range(8): A(f'v_xor_b32 v{dst+2*g+1}, s{TAG}, v{dst+2*g+1}')
    A(f'v_or3_b32 v{dst+1}, v{dst+1}, v{dst+3}, v{dst+5}\nv_or3_b32 v{dst+7}, v{dst+7}, v{dst+9}, v{dst+11}\nv_or3_b32 v{dst+1}, v{dst+1}, v{dst+13}, v{dst+15}\nv_or_b32 v{dst+1}, v{dst+1}, v{dst+7}\nv_cmp_ne_u32 vcc, 0, v{dst+1}')
    A.spin_check(lab + 'x')
    A(f's_cbranch_vccnz {lab}')
    A.label(lab + 'x')
    for q in range(8): A(f'v_and_b32 v{dst+2*q+1}, s{sMASK}, v{dst+2*q}\nv_lshlrev_b32 v{dst+2*q}, 16, v{dst+2*q}')

def p2b(A):
    A(f's_lshr_b32 s8, s{sLO}, 2\ns_lshl_b32 s1, s{sHI}, 2\ns_add_u32 s1, s1, s8\ns_and_b32 s8, s{sLO}, 3\ns_mul_i32 s11, s8, 112\ns_lshl_b32 s9, s{sW}, 5\ns_add_u32 s11, s11, s9')
    A(f'v_lshrrev_b32 v244, 5, v{VL}\nv_lshlrev_b32 v245, 4, v244\nv_and_b32 v246, 31, v{VL}\nv_mul_u32_u24 v246, 896, v246\nv_lshl_add_u32 v246, v244, 3, v246')
    A(f's_mul_i32 s8, s1, 28672\ns_lshl_b32 s9, s11, 1\ns_add_u32 s8, s8, s9')
    for g in range(4): A(f'buffer_load_dwordx2 {v(176+4*g,2)}, v246, {srd(X)}, s8 offen offset:{16*g}')
    modvec(A, 2, 11, 144, 'L_ga', 245)
    modvec(A, 4, 11, 160, 'L_c1b', 245)
    for g in range(4):
        b = 176 + 4*g
        A(f'v_and_b32 v{b+3}, s{sMASK}, v{b+1}\nv_lshlrev_b32 v{b+2}, 16, v{b+1}\nv_and_b32 v{b+1}, s{sMASK}, v{b}\nv_lshlrev_b32 v{b}, 16, v{b}')
    A(f's_lshl_b32 s8, s1, 7\ns_lshl_b32 s9, s{sW}, 4\ns_add_u32 s8, s8, s9\ns_add_u32 s8, s8, {FB}\nv_lshlrev_b32 v244, 2, v{VL}\nv_lshlrev_b32 v246, 4, v{VL}')
    A.poll(4, 244, 's8', TAG+2, 245)
    A.stamp('sb_flag')
    A(f's_lshl_b32 s8, s1, 15\ns_lshl_b32 s9, s{sW}, 13\ns_add_u32 s8, s8, s9\ns_add_u32 s8, s8, {OF}\ns_add_u32 s9, s9, {OFL}')
    for p in range(8):
        A(f's_add_u32 m0, s9, {1024*p}\ns_add_u32 s10, s8, {1024*p}\nbuffer_load_dwordx4 v246, {srd(WS)}, s10 offen sc1 lds')
    A(f'v_add_u32 v247, {OFL}, v246\ns_waitcnt vmcnt(0)\ns_barrier')
    A(f's_or_b32 s8, s2, s{sW}\ns_cmp_lg_u32 s8, 0\ns_cbranch_scc1 L_eb\nv_add_u32 v253, 1, v253\ns_mov_b64 exec, 1\nbuffer_store_dword v253, v254, {srd(WS)}, 0 offen sc1\ns_mov_b64 exec, -1')
    A.label('L_eb')
    def rd(k): A(f'ds_read_b128 {v(192+4*(k%8),4)}, v247 offset:{1024*k}')
    for k in range(6): rd(k)
    for k in range(32):
        if k + 6 < 32: rd(k+6)
        A(f's_waitcnt lgkmcnt({min(6, 31-k)})\nv_mfma_f32_32x32x16_bf16 {v(128,16)}, {v(4*k,4)}, {v(192+4*(k%8),4)}, {"0" if k == 0 else v(128,16)}')
    A('s_barrier')
    w3_dma2(A, 0)
    for i in range(8): A(f'v_pk_fma_f32 {v(128+2*i,2)}, {v(128+2*i,2)}, {v(144+2*i,2)}, {v(176+2*i,2)}')
    for i in range(8): A(f'v_cvt_pk_bf16_f32 v{192+i}, v{128+2*i}, v{129+2*i}')
    A('v_mov_b32 v208, 0\nv_mov_b32 v210, 0')
    for i in range(8): A(f'v_lshlrev_b32 v{128+2*i}, 16, v{192+i}\nv_and_b32 v{129+2*i}, s{sMASK}, v{192+i}')
    for i in range(8): A(f'v_pk_mul_f32 {v(128+2*i,2)}, {v(128+2*i,2)}, {v(160+2*i,2)}')
    for i in range(8): A(f'v_cvt_pk_bf16_f32 v{200+i}, v{128+2*i}, v{129+2*i}')
    A(f's_and_b32 s8, s{sLO}, 3\ns_mul_i32 s9, s8, 7\ns_lshl_b32 s10, s{sW}, 1\ns_add_u32 s9, s9, s10\ns_mul_i32 s10, s1, 28\ns_add_u32 s9, s9, s10\ns_lshl_b32 s9, s9, 10\ns_add_u32 s10, s9, {YF}\ns_add_u32 s9, s9, {X1F}')
    A(f'buffer_store_dwordx4 v[200:203], v246, {srd(WS)}, s10 offen sc1\nbuffer_store_dwordx4 v[192:195], v246, {srd(WS)}, s9 offen sc1')
    for i in range(4): A(f'v_dot2c_f32_bf16 v208, s{sONES}, v{192+i}\nv_dot2c_f32_bf16 v210, v{192+i}, v{192+i}')
    A(f's_cmp_eq_u32 s{sW}, 3\ns_cbranch_scc1 L_p2b3')
    A(f'buffer_store_dwordx4 v[204:207], v246, {srd(WS)}, s10 offen offset:1024 sc1\nbuffer_store_dwordx4 v[196:199], v246, {srd(WS)}, s9 offen offset:1024 sc1')
    for i in range(4, 8): A(f'v_dot2c_f32_bf16 v208, s{sONES}, v{192+i}\nv_dot2c_f32_bf16 v210, v{192+i}, v{192+i}')
    A.label('L_p2b3')
    A('s_nop 2')
    xhalf(A, 208, 210, 'v_add_f32', None)
    A(f'v_mov_b32 v209, v210\ns_lshl_b32 s8, s8, 2\ns_add_u32 s8, s8, s{sW}\ns_lshl_b32 s9, s1, 4\ns_add_u32 s9, s9, s8\ns_lshl_b32 s9, s9, 8\ns_add_u32 s9, s9, {STAT}\nv_lshlrev_b32 v244, 3, v{VL}')
    A(f's_mov_b32 exec_hi, 0\nbuffer_store_dwordx2 v[208:209], v244, {srd(WS)}, s9 offen sc1\ns_mov_b64 exec, -1')
    A(f's_lshl_b32 s8, s8, 2\ns_lshl_b32 s9, s1, 7\ns_add_u32 s8, s8, s9\ns_add_u32 s8, s8, {FC}\ns_waitcnt vmcnt(0)')
    A.flag('s8', TAG+3, 244, 254)
    A.stamp('y_pub')

def p3(A):
    WB = 224
    A(f's_mul_i32 s8, s{sLO}, 7168\ns_add_u32 s8, s8, {AEXT}\ns_add_u32 s9, s8, 4096\nv_lshlrev_b32 v246, 4, v{VL}')
    A.label('L_ae')
    for i in range(7): A(f'buffer_load_dwordx4 {v(4*i,4)}, v246, {srd(WS)}, s{8 if i < 4 else 9} offen offset:{1024*(i&3)} sc1')
    A('s_waitcnt vmcnt(0)\nv_mov_b32 v28, 0')
    for i in range(7): A(f'v_xor_b32 v{4*i+3}, s{TAG+6}, v{4*i+3}\nv_or_b32 v28, v28, v{4*i+3}')
    A('v_cmp_ne_u32 vcc, 0, v28')
    A.spin_check('L_aex')
    A('s_cbranch_vccnz L_ae')
    A.label('L_aex')
    for i in range(28): A(f'v_accvgpr_write_b32 a{WB+i}, v{i}')
    lanebits(A, hl=224, nb=225, r=226, c=227)
    A('v_lshl_add_u32 v224, v224, 2, v226')
    A(f'v_lshrrev_b32 v228, 1, v227\nv_lshrrev_b32 v229, 1, v226\nv_lshl_or_b32 v228, v229, 2, v228\nv_lshl_or_b32 v228, v225, 1, v228')
    A(f'v_lshlrev_b32 v229, 7, v224\nv_and_b32 v230, 1, v227\nv_lshl_add_u32 v229, v230, 3, v229\nv_mul_u32_u24 v230, {P1U}, v225\nv_add_u32 v229, v229, v230')
    for i in range(4): A(f'v_xor_b32 v230, {2*i}, v228\nv_lshl_add_u32 v{240+i}, v230, 4, v229')
    A(f'v_mul_u32_u24 v229, 96, v224\nv_lshl_add_u32 v229, v227, 3, v229\nv_mul_u32_u24 v230, {DA}, v225\nv_add_u32 v244, v229, v230\nv_add_u32 v244, {P2A}, v244\nv_mul_u32_u24 v230, {DB}, v225\nv_add_u32 v245, v229, v230')
    A(f's_lshl_b32 s1, s{sHI}, 2\ns_add_u32 s1, s1, s{sW}\ns_lshl_b32 s8, s1, 7\ns_add_u32 s8, s8, {FC}\nv_lshlrev_b32 v224, 2, v{VL}')
    A('s_barrier')
    A.poll(16, 224, 's8', TAG+3, 225)
    A.stamp('sc_flag')
    A(f'v_and_b32 v224, 31, v{VL}\nv_lshrrev_b32 v225, 5, v{VL}\nv_lshlrev_b32 v224, 3, v224\nv_lshl_add_u32 v224, v225, 11, v224\ns_lshl_b32 s8, s1, 12\ns_add_u32 s8, s8, {STAT}')
    for i in range(8): A(f'buffer_load_dwordx2 {v(112+2*i,2)}, v224, {srd(WS)}, s8 offen offset:{256*i} sc1')
    A(f's_mul_i32 s8, s1, 28672\ns_add_u32 s8, s8, {YF}')
    for ks in range(28):
        A(f'buffer_load_dwordx4 {v(4*ks,4)}, v246, {srd(WS)}, s8 offen offset:{1024*(ks&3)} sc1')
        if ks & 3 == 3 and ks < 27: A('s_add_u32 s8, s8, 4096')
    A('s_waitcnt vmcnt(28)')
    for i in range(1, 8): A(f'v_pk_add_f32 v[112:113], v[112:113], {v(112+2*i,2)}')
    A('v_mov_b32 v114, v113')
    xhalf(A, 112, 114, 'v_add_f32', None)
    lnstats(A, 112, 114, 113)
    A(f'v_mul_f32 v248, v114, v114\nv_xor_b32 v112, 0x80000000, v112\ns_mov_b32 s8, 0x07060706\nv_perm_b32 v224, v112, v112, s8\nv_perm_b32 v225, v113, v113, s8\nv_mov_b32 v226, 0\nv_mov_b32 v227, 0')
    for i in range(7): A(f'v_mfma_f32_32x32x16_bf16 {v(112+16*i,16)}, {a(WB+4*i,4)}, v[224:227], 0')
    def epi(tiles):
        for i in tiles:
            b = 112 + 16*i
            for q in range(4): A(f'v_pk_mul_f32 {v(b+2*q,2)}, {v(b+2*q,2)}, {v(b+8+2*q,2)}')
            for q in range(4): A(f'v_pk_mul_f32 {v(b+2*q,2)}, {v(b+2*q,2)}, v[248:249] op_sel_hi:[1,0]')
            for q in range(4): A(f'v_cvt_pk_bf16_f32 v{b+8+q}, v{b+2*q}, v{b+2*q+1}')
            A(f'buffer_store_dwordx4 {v(b+8,4)}, v246, {srd(WS)}, s{8 if i < 4 else 9} offen offset:{1024*(i&3)} sc1')
    seq = [(ks, i) for ks in range(28) for i in range(4)] + [(ks, i) for ks in range(28) for i in range(4, 7)]
    def rd(n):
        ks, i = seq[n]; wb = WB + 4*(n % 8)
        for sec in range(2):
            if i < 4: A(f'ds_read_b64_tr_b16 {a(wb+2*sec,2)}, v{240+i} offset:{(16*ks+8*sec)*128}')
            else: A(f'ds_read_b64_tr_b16 {a(wb+2*sec,2)}, v{244+(ks>=14)} offset:{(16*(ks%14)+8*sec)*96+32*(i-4)}')
    PD = 5
    def fd(p):
        A(f's_lshl_b32 s10, s{sHI}, 2\ns_lshr_b32 s11, s{sLO}, 2\ns_add_u32 s10, s10, s11\ns_lshl_b32 s10, s10, 7\ns_and_b32 s11, s{sLO}, 3\ns_lshl_b32 s11, s11, 2\ns_add_u32 s11, s11, s{sW}\ns_lshl_b32 s11, s11, 2\ns_add_u32 s10, s10, s11\ns_add_u32 s10, s10, {FD+8192*p}\ns_waitcnt vmcnt(0)')
        A.flag('s10', TAG+4+p, 224, 254)
    N = len(seq)
    stops = {56: 'mid1', 112: 'end1', 112+42: 'mid2'}
    issued = 0
    def nextstop(n):
        c = [x for x in stops if x > n]
        return min(c) if c else N
    for n in range(N):
        lim = nextstop(n - 1) if n not in stops else nextstop(n)
        if n in stops:
            if stops[n] == 'mid1':
                A('s_waitcnt vmcnt(0)\ns_barrier'); w3_dma2(A, 1)
            elif stops[n] == 'end1':
                A.stamp('pass1')
                A(f's_mul_i32 s8, s1, 112\ns_mul_i32 s9, s{sLO}, 7\ns_add_u32 s8, s8, s9\ns_lshl_b32 s8, s8, 10\ns_add_u32 s8, s8, {HH}\ns_add_u32 s9, s8, 4096')
                epi(range(4)); fd(0)
            elif stops[n] == 'mid2':
                A('s_waitcnt vmcnt(0)\ns_barrier')
        lim = nextstop(n) if stops.get(nextstop(n)) == 'mid2' else N
        while issued < min(n + PD + 1, lim): rd(issued); issued += 1
        ks, i = seq[n]
        if n < 56 and i == 0: A(f's_waitcnt vmcnt({27-ks})')
        A(f's_waitcnt lgkmcnt({2*(issued-1-n)})')
        A(f'v_mfma_f32_32x32x16_bf16 {v(112+16*i,16)}, {a(WB+4*(n%8),4)}, {v(4*ks,4)}, {v(112+16*i,16)}')
    A.stamp('pass2')
    epi(range(4, 7)); fd(1)
    A.stamp('hh_pub')

def p4(A):
    A(f's_barrier\ns_cmp_ge_u32 s{sLO}, 14\ns_cbranch_scc1 L_done')
    A(f's_and_b32 s12, s{sLO}, 1\ns_lshr_b32 s13, s{sLO}, 1\ns_lshl_b32 s1, s{sHI}, 2\ns_lshl_b32 s8, s12, 1\ns_add_u32 s1, s1, s8')
    A(f'v_lshrrev_b32 v244, 1, v{VL}\nv_lshlrev_b32 v244, 4, v244\nv_and_b32 v245, 1, v{VL}\nv_add_u32 v245, s8, v245\nv_lshl_add_u32 v244, v245, 2, v244')
    first = True
    for p in range(2):
        A(f's_lshl_b32 s8, s{sHI}, 2\ns_add_u32 s8, s8, s{sW}\ns_lshl_b32 s8, s8, 7\ns_add_u32 s8, s8, {FD+8192*p}')
        A.poll(8, 244, 's8', TAG+4+p, 245)
        A.stamp(f'sd{p}')
        fks = [7*mm + i for mm in range(4) for i in (range(4) if p == 0 else range(4, 7))]
        A(f's_mul_i32 s8, s1, 112\ns_mul_i32 s9, s{sW}, 28\ns_add_u32 s8, s8, s9\ns_lshl_b32 s8, s8, 10\ns_add_u32 s8, s8, {HH}')
        for n, fk in enumerate(fks):
            for rho in range(2):
                A(f's_add_u32 s10, s8, {(rho*112+fk)*1024}\nbuffer_load_dwordx4 {v(64+8*n+4*rho,4)}, v246, {srd(WS)}, s10 offen sc1')
        for n, fk in enumerate(fks):
            for rho in range(2):
                A(f's_waitcnt vmcnt({2*len(fks)-1-2*n-rho})')
                for nu in range(2):
                    d = v(16*(2*rho+nu), 16)
                    A(f'v_mfma_f32_32x32x16_bf16 {d}, {a(8*fk+4*nu,4)}, {v(64+8*n+4*rho,4)}, {"0" if (p == 0 and n == 0) else d}')
    A.stamp('p4_gemm')
    A(f's_lshr_b32 s8, s{sW}, 1\ns_add_u32 s1, s1, s8\ns_and_b32 s9, s{sW}, 1\ns_lshl_b32 s11, s13, 1\ns_add_u32 s11, s11, s9')
    A(f's_mul_i32 s8, s1, 28\ns_lshl_b32 s9, s11, 1\ns_add_u32 s8, s8, s9\ns_lshl_b32 s8, s8, 10\ns_add_u32 s8, s8, {X1F}\ns_lshl_b32 s11, s11, 5')
    A(f'buffer_load_dwordx4 v[192:195], v246, {srd(WS)}, s8 offen sc1\nbuffer_load_dwordx4 v[196:199], v246, {srd(WS)}, s8 offen offset:1024 sc1')
    A(f'v_lshrrev_b32 v244, 5, v{VL}\nv_lshlrev_b32 v245, 4, v244')
    modvec(A, 5, 11, 200, 'L_gb', 245)
    A(f's_lshl_b32 s8, s{sW}, 12\nv_add_u32 v244, s8, v246\ns_lshl_b32 s8, s{sW}, 14\nv_add_u32 v245, s8, v246')
    for tau in range(4):
        for q in range(4): A(f'ds_write_b128 v244, {v(16*tau+4*q,4)} offset:{16384*tau+1024*q}')
    A('s_waitcnt lgkmcnt(0)\ns_barrier')
    for sw in range(4):
        for q in range(4): A(f'ds_read_b128 {v(64+16*sw+4*q,4)}, v245 offset:{4096*sw+1024*q}')
    for i in range(8): A(f'v_lshlrev_b32 v{216+2*i}, 16, v{192+i}\nv_and_b32 v{217+2*i}, s{sMASK}, v{192+i}')
    A('s_waitcnt lgkmcnt(0)')
    for i in range(8):
        A(f'v_pk_add_f32 {v(64+2*i,2)}, {v(64+2*i,2)}, {v(80+2*i,2)}\nv_pk_add_f32 {v(96+2*i,2)}, {v(96+2*i,2)}, {v(112+2*i,2)}')
    for i in range(8): A(f'v_pk_add_f32 {v(64+2*i,2)}, {v(64+2*i,2)}, {v(96+2*i,2)}')
    for i in range(8): A(f'v_pk_fma_f32 {v(64+2*i,2)}, {v(64+2*i,2)}, {v(200+2*i,2)}, {v(216+2*i,2)}')
    for i in range(8): A(f'v_cvt_pk_bf16_f32 v{80+i}, v{64+2*i}, v{65+2*i}')
    A(f'v_and_b32 v244, 31, v{VL}\nv_mul_u32_u24 v244, 896, v244\nv_lshrrev_b32 v245, 5, v{VL}\nv_lshl_add_u32 v244, v245, 4, v244\ns_mul_i32 s8, s1, 28672\ns_lshl_b32 s9, s11, 1\ns_add_u32 s8, s8, s9')
    for pr in range(2):
        b = 80 + 4*pr
        A(f'v_permlane32_swap_b32 v{b}, v{b+2}\nv_permlane32_swap_b32 v{b+1}, v{b+3}')
    for pr in range(2): A(f'buffer_store_dwordx4 {v(80+4*pr,4)}, v244, {srd(OUT)}, s8 offen offset:{32*pr}')
    A.label('L_done')
    A.stamp('end')

def epilogue(A):
    if A.stamps == 2:
        A(f's_cmp_lg_u32 s2, {A.dbgwg}\ns_cbranch_scc1 L_exit\ns_cmp_lg_u32 s{sW}, 0\ns_cbranch_scc1 L_exit')
        A('v_mov_b32 v1, 0')
        sel = [i for i, n in enumerate(A.stnames) if n not in ('start', 'gv_pub', 'phik', 'kv_pub', 'hh_pub', 'sd0', 'staged')][:16]
        for j, i in enumerate(sel): A(f's_sub_u32 s8, s{sST+i}, s{sST}\nv_writelane_b32 v1, s8, {j}')
        A(f'v_lshlrev_b32 v2, 2, v{VL}\ns_mov_b64 exec, 0xffff\nglobal_store_dword v2, v1, s[42:43]\ns_waitcnt vmcnt(0)')
        print('debug order:', [A.stnames[i] for i in sel])
    elif A.stamps:
        A(f's_lshl_b32 s8, s2, 2\ns_add_u32 s8, s8, s{sW}\ns_lshl_b32 s8, s8, 7\ns_add_u32 s8, s8, {DBGA}')
        A('v_mov_b32 v1, 0')
        for i in range(A.nst): A(f'v_writelane_b32 v1, s{sST+i}, {i}')
        A(f'v_lshlrev_b32 v2, 2, v{VL}\ns_mov_b32 exec_hi, 0\nbuffer_store_dword v1, v2, {srd(WS)}, s8 offen\ns_waitcnt vmcnt(0)')
    A.label('L_exit')
    A('s_endpgm')

def dump(A, reg, n, slot):
    A(f's_lshl_b32 s8, s2, 2\ns_add_u32 s8, s8, s{sW}\ns_lshl_b32 s8, s8, 13\ns_add_u32 s8, s8, {DBGB+slot*256}\nv_lshlrev_b32 v244, 2, v{VL}')
    for i in range(n): A(f'buffer_store_dword v{reg+i}, v244, {srd(WS)}, s8 offen offset:{256*i}')
    A('s_waitcnt vmcnt(0)')

def build(stop=99, stamps=False):
    A = G(stamps); A.dbgwg = 77; A.begin_kernel(KNAME)
    prologue(A)
    phase0_1(A)
    p1_kv(A)
    p1_q(A)
    for _ in range(1):
        if stop == 1:
            dump(A, 192, 16, 0); break
        aext(A)
        p2a(A)
        if stop == 2: break
        wo_read(A)
        A('s_barrier')
        wd_stage(A)
        A('s_barrier')
        w3_dma1(A); w3_pat2(A)
        A.stamp('staged')
        p2b(A)
        if stop == 3: break
        p3(A)
        if stop == 4: break
        p4(A)
    epilogue(A)
    A.end_kernel(KNAME, (256,1,1), (256,1,1), 163840, 512, 256)
    rep = []
    A.L = hazard.fix(A.L, rep)
    return A.text(single=True), A.stnames, rep[0]

if __name__ == '__main__':
    stop = int(sys.argv[2]) if len(sys.argv) > 2 else 99
    stamps = int(sys.argv[3]) if len(sys.argv) > 3 else 0
    t, names, nops = build(stop, stamps)
    open(sys.argv[1], 'w').write(t)
    open(sys.argv[1] + '.stamps', 'w').write(' '.join(names))
    print('auto nop states', nops, 'lines', t.count('\n'))
```

```python
import sys, re
from asmlib import *
import hazard

OPT = {}
EPOCH = 0x0; MODG = 0x1000; FA = 0x4000; FB = 0x5000; FC = 0x7000; FD = 0x9000; FW3 = 0x1D000; FWD = 0x1E000
AEXT = 0x20000; STAT = 0x40000; KVP = 0x100000; OF = 0x200000; YF = 0x400000; W3P = 0x600000; WDP = 0x940000; HH = 0xB00000
DBGA = 0x1400000; DBGB = 0x1500000
sW, sH1, sR1, sHI, sLO = 3, 4, 5, 6, 7
sXCD, sJ = 4, 5
sE = 13
X, WQKV, WPHI, WO, WG, WU, WD, CC, WMOD, OUT, WS = [44 + 4*i for i in range(11)]
def srd(b): return f's[{b}:{b+3}]'
TAG = 88
sSPIN = 95
sL2E = 96; sUP = 98; sMASK = 100; sONES = 101
sST = 16
VL = 255
SPIN_MAX = 2000000
XREG = 28672; HIA = 114688; WQL = 122880; TBL = 151552; KVS = TBL + 4096; AXT = KVS + 4096
SLOT = [65536, 94208, 122880, 0, 28672]
PHI = 98304; VFR = PHI + 16384
PSC = 0; WKV2 = 12288
MFMA = 'v_mfma_f32_32x32x16_bf16'

class G(Asm):
    def __init__(self, stamps=0):
        super().__init__(); self.stamps = stamps; self.nst = 0; self.stnames = []
        self.vm = 0; self.cond = 0
    def __call__(self, t):
        for l in t.split('\n'):
            l = l.strip()
            if not l: continue
            if l.startswith(('buffer_', 'global_')) and not self.cond: self.vm += 1
            self.L.append('    ' + l)
    def tok(self): return self.vm
    def wait(self, tok):
        n = self.vm - tok
        assert n >= 0
        self(f's_waitcnt vmcnt({min(n, 63)})') if n <= 63 else self('s_waitcnt vmcnt(63)')
        assert n <= 63, n
    def cbeg(self): self.cond += 1
    def cend(self): self.cond -= 1
    def stamp(self, name):
        if not self.stamps: return
        if OPT.get('only') and name not in OPT['only']: return
        i = self.nst; self.nst += 1; self.stnames.append(name)
        assert i < 24
        self(f'{"s_memtime" if OPT.get("cyc") else "s_memrealtime"} s[40:41]\ns_waitcnt lgkmcnt(0)\ns_mov_b32 s{sST+i}, s40')
    def spin_check(self, out):
        self(f's_add_u32 s{sSPIN}, s{sSPIN}, 1\ns_cmp_gt_u32 s{sSPIN}, {SPIN_MAX}\ns_cbranch_scc1 {out}')
    def setexec(self, n):
        if n >= 64: self('s_mov_b64 exec, -1')
        elif n <= 31: self(f's_mov_b64 exec, {hex((1 << n) - 1)}')
        else: self(f's_mov_b32 exec_lo, -1\ns_mov_b32 exec_hi, {hex((1 << (n-32)) - 1)}')
    def poll(self, nl, voff, soff, tag, tmp, sleep=1, bg=0):
        l = self.newlabel('P'); o = self.newlabel('PX')
        self.setexec(nl)
        self.label(l)
        self(f'buffer_load_dword v{tmp}, v{voff}, {srd(WS)}, {soff} offen sc1\ns_waitcnt vmcnt(0)\nv_cmp_ne_u32 vcc, s{tag}, v{tmp}')
        self.spin_check(o)
        self(f's_cbranch_vccz {o}')
        if bg:
            self('s_mov_b64 exec, -1'); bg_emit(self, bg); self.setexec(nl)
        if sleep: self(f's_sleep {sleep}')
        self(f's_branch {l}')
        self.label(o)
        self('s_mov_b64 exec, -1')
    def flag(self, soff, tag, tmp, zero=254):
        self(f'v_mov_b32 v{tmp}, s{tag}\ns_mov_b64 exec, 1\nbuffer_store_dword v{tmp}, v{zero}, {srd(WS)}, {soff} offen sc1\ns_mov_b64 exec, -1')
    def mix(self, main, bg, every, start=0):
        bg = list(bg); k = 0
        for i, l in enumerate(main):
            self(l)
            if bg and i >= start and (i - start) % every == every - 1:
                b = bg.pop(0)
                if b == 'BG': bg_emit(self)
                else: self(b)
        for b in bg:
            if b != 'BG': self(b)

class Rec:
    def __init__(self): self.l = []
    def __call__(self, t): self.l += [x.strip() for x in t.split('\n') if x.strip()]

def xhalf(A, a, b, op):
    A(f'v_permlane32_swap_b32 v{a}, v{b}\n{op} v{a}, v{a}, v{b}\nv_mov_b32 v{b}, v{a}\nv_permlane32_swap_b32 v{a}, v{b}')

def softmax2(A, P, EP, EM, O, T):
    mx, nm = T, T + 2
    A(f'v_max3_f32 v{mx}, v{P}, v{P+1}, v{P+2}\nv_max3_f32 v{nm}, -v{P}, -v{P+1}, -v{P+2}')
    for i in range(3, 15, 2):
        A(f'v_max3_f32 v{mx}, v{mx}, v{P+i}, v{P+i+1}\nv_max3_f32 v{nm}, v{nm}, -v{P+i}, -v{P+i+1}')
    A(f'v_max_f32 v{mx}, v{mx}, v{P+15}\nv_max_f32_e64 v{nm}, v{nm}, -v{P+15}')
    xhalf(A, mx, nm, 'v_max_f32')
    A(f'v_mul_f32_e64 v{mx}, -v{mx}, s{sL2E}\nv_mul_f32_e64 v{nm}, -v{nm}, s{sL2E}')
    for i in range(0, 16, 2):
        A(f'v_pk_fma_f32 {v(EP+i,2)}, {v(P+i,2)}, {s(sL2E,2)}, {v(mx,2)} op_sel_hi:[1,1,0]')
        A(f'v_pk_fma_f32 {v(EM+i,2)}, {v(P+i,2)}, {s(sL2E,2)}, {v(nm,2)} op_sel_hi:[1,1,0] neg_lo:[1,0,0] neg_hi:[1,0,0]')
    for i in range(16):
        A(f'v_exp_f32 v{EP+i}, v{EP+i}\nv_exp_f32 v{EM+i}, v{EM+i}')
    A(f's_mov_b64 exec, {s(sUP,2)}\n' + '\n'.join(f'v_mov_b32 v{EP+i}, 0\nv_mov_b32 v{EM+i}, 0' for i in range(12, 16)) + '\ns_mov_b64 exec, -1') if isinstance(A, G) else \
        A.l.append(f's_mov_b64 exec, {s(sUP,2)}\n' + '\n'.join(f'v_mov_b32 v{EP+i}, 0\nv_mov_b32 v{EM+i}, 0' for i in range(12, 16)) + '\ns_mov_b64 exec, -1')
    A(f'v_pk_add_f32 {v(mx,2)}, {v(EP,2)}, {v(EP+2,2)}\nv_pk_add_f32 {v(nm,2)}, {v(EM,2)}, {v(EM+2,2)}')
    for i in range(4, 16, 2):
        A(f'v_pk_add_f32 {v(mx,2)}, {v(mx,2)}, {v(EP+i,2)}\nv_pk_add_f32 {v(nm,2)}, {v(nm,2)}, {v(EM+i,2)}')
    A(f'v_add_f32 v{mx}, v{mx}, v{mx+1}\nv_add_f32 v{nm}, v{nm}, v{nm+1}')
    xhalf(A, mx, nm, 'v_add_f32')
    A(f'v_rcp_f32 v{mx}, v{mx}\nv_rcp_f32 v{nm}, v{nm}')
    for i in range(0, 16, 2):
        A(f'v_pk_mul_f32 {v(EP+i,2)}, {v(EP+i,2)}, {v(mx,2)} op_sel_hi:[1,0]')
        A(f'v_pk_mul_f32 {v(EM+i,2)}, {v(EM+i,2)}, {v(nm,2)} op_sel_hi:[1,0]')
    for i in range(8):
        A(f'v_cvt_pk_bf16_f32 v{O+i}, v{EP+2*i}, v{EP+2*i+1}\nv_cvt_pk_bf16_f32 v{O+8+i}, v{EM+2*i}, v{EM+2*i+1}')

def lnstats(A, sm, sq, t):
    A(f'v_mul_f32 v{sm}, 0x3b124925, v{sm}\nv_mul_f32 v{sq}, 0x3b124925, v{sq}')
    A(f'v_fma_f32 v{sq}, -v{sm}, v{sm}, v{sq}\nv_max_f32 v{sq}, 0, v{sq}')
    A(f'v_cvt_pk_bf16_f32 v{t}, v{sm}, v{sq}\nv_lshlrev_b32 v{sm}, 16, v{t}\nv_and_b32 v{sq}, s{sMASK}, v{t}')
    A(f'v_add_f32 v{sq}, 0x3727c5ac, v{sq}\nv_cvt_pk_bf16_f32 v{t}, v{sq}, v{sq}\nv_and_b32 v{sq}, s{sMASK}, v{t}')
    A(f'v_sqrt_f32 v{sq}, v{sq}\nv_cvt_pk_bf16_f32 v{t}, v{sq}, v{sq}\nv_and_b32 v{t}, s{sMASK}, v{t}\nv_rcp_f32 v{sq}, v{t}')

def lanebits(A, hl=None, nb=None, r=None, c=None):
    if hl is not None: A(f'v_lshrrev_b32 v{hl}, 5, v{VL}')
    if nb is not None: A(f'v_bfe_u32 v{nb}, v{VL}, 4, 1')
    if r is not None: A(f'v_bfe_u32 v{r}, v{VL}, 2, 2')
    if c is not None: A(f'v_and_b32 v{c}, 3, v{VL}')

def lane_restore(A):
    A(f'v_mbcnt_lo_u32_b32 v{VL}, -1, 0\nv_mbcnt_hi_u32_b32 v{VL}, -1, v{VL}\nv_mov_b32 v254, 0')

def dma(m0expr, voff, rs, soff, fl=''):
    b, i = m0expr
    l = f's_add_u32 m0, s{b}, {i}' if b is not None else f's_mov_b32 m0, {i}'
    sb, si = soff
    return f'{l}\ns_add_u32 s15, s{sb}, {si}\nbuffer_load_dwordx4 v{voff}, {srd(rs)}, s15 offen {fl} lds'

def tags(A):
    A(f'v_readfirstlane_b32 s{sE}, v253\ns_lshl_b32 s8, s{sE}, 4')
    for p in range(7): A(f's_add_u32 s9, s8, {p+1}\ns_mul_i32 s{TAG+p}, s9, 0x9E3779B1')

def prologue(A):
    A('s_cmp_ge_u32 s2, 256\ns_cbranch_scc1 L_exit')
    A('s_load_dwordx16 s[16:31], s[0:1], 0\ns_load_dwordx8 s[32:39], s[0:1], 64\ns_load_dwordx2 s[40:41], s[0:1], 96')
    A(f'v_and_b32 v{VL}, 63, v0\nv_lshrrev_b32 v1, 6, v0\nv_readfirstlane_b32 s{sW}, v1')
    A(f's_and_b32 s{sXCD}, s2, 7\ns_lshr_b32 s{sJ}, s2, 3\ns_lshr_b32 s8, s{sJ}, 4\ns_lshl_b32 s{sHI}, s{sXCD}, 1\ns_add_u32 s{sHI}, s{sHI}, s8\ns_and_b32 s{sLO}, s{sJ}, 15')
    A(f's_mov_b32 s{sSPIN}, 0\ns_mov_b32 s{sL2E}, 0x3fb8aa3b\ns_mov_b32 s{sL2E+1}, 0x3fb8aa3b\ns_mov_b32 s{sUP}, 0\ns_mov_b32 s{sUP+1}, -1')
    A(f's_mov_b32 s{sMASK}, 0xffff0000\ns_mov_b32 s{sONES}, 0x3f803f80')
    sizes = {X: 1835008, WQKV: 1204224, WPHI: 25088, WO: 401408, WG: 1605632, WU: 1605632, WD: 1605632, CC: 896, WMOD: 2408448, OUT: 1835008, WS: 0x2000000}
    for b, n in sizes.items(): A(f's_mov_b32 s{b+2}, {n}\ns_mov_b32 s{b+3}, 0x00020000')
    A(f's_lshr_b32 s8, s{sJ}, 3\ns_lshl_b32 s8, s8, 3\ns_add_u32 s8, s8, s{sXCD}\ns_lshl_b32 s8, s8, 3\ns_and_b32 s9, s{sJ}, 7\ns_add_u32 s12, s8, s9')
    A(f's_mov_b32 s{sH1}, s{sLO}\ns_mov_b32 s{sR1}, s{sHI}\ns_mul_i32 s0, s{sW}, {XREG}' .replace('s_mul_i32 s0', 's_mul_i32 s14'))
    A(f'v_mov_b32 v254, 0\nv_lshlrev_b32 v1, 7, v{VL}')
    A('s_waitcnt lgkmcnt(0)')
    src = {X: 16, WQKV: 18, WPHI: 20, WO: 22, WG: 26, WU: 28, WD: 30, CC: 32, WMOD: 34, OUT: 36, WS: 40}
    for b in (X, WQKV, WS, WMOD, CC, WPHI, WO, WG, WU, WD, OUT): A(f's_mov_b64 {s(b,2)}, {s(src[b],2)}')
    A('s_mov_b64 s[42:43], s[38:39]\ns_mov_b32 s0, s14')
    A(f'buffer_load_dword v253, v254, {srd(WS)}, 0 offen sc1')

def gemv_loads(A, dst_w, dst_c, reg, rot, t0=248, lane=VL):
    A(f'v_mul_u32_u24 v{t0}, 5376, v{lane}\nv_lshlrev_b32 v{t0+1}, 1, v{lane}\ns_lshl_b32 s8, s12, 4')
    if rot:
        A('s_and_b32 s9, s12, 7\ns_cmp_eq_u32 s9, 7\ns_cselect_b32 s9, 0, s9')
        for i in range(7):
            A(f's_lshl_b32 s10, s9, 7\nbuffer_load_ushort {reg(dst_c+i,1)}, v{t0+1}, {srd(CC)}, s10 offen')
            A(f's_mul_i32 s10, s9, 344064\ns_add_u32 s10, s10, s8\nbuffer_load_dwordx4 {reg(dst_w+4*i,4)}, v{t0}, {srd(WMOD)}, s10 offen')
            if i < 6: A('s_add_u32 s9, s9, 1\ns_cmp_eq_u32 s9, 7\ns_cselect_b32 s9, 0, s9')
    else:
        for i in range(7):
            A(f'buffer_load_ushort {reg(dst_c+i,1)}, v{t0+1}, {srd(CC)}, 0 offen offset:{128*i}')
            A(f'buffer_load_dwordx4 {reg(dst_w+4*i,4)}, v{t0}, {srd(WMOD)}, s8 offen')
            if i < 6: A('s_add_u32 s8, s8, 344064')

def gemv_compute(A, W, C, T):
    acc = T; e = T + 8
    for i in range(8): A(f'v_mov_b32 v{acc+i}, 0')
    for i in range(7): A(f'v_lshlrev_b32 v{C+i}, 16, v{C+i}\nv_mul_f32_e64 v{e+i}, -v{C+i}, s{sL2E}\nv_exp_f32 v{e+i}, v{e+i}')
    for i in range(7): A(f'v_add_f32 v{e+i}, 1.0, v{e+i}\nv_rcp_f32 v{e+i}, v{e+i}')
    for i in range(7): A(f'v_mul_f32 v{C+i}, v{C+i}, v{e+i}\nv_cvt_pk_bf16_f32 v{C+i}, v{C+i}, v{C+i}\nv_and_b32 v{e+i}, s{sMASK}, v{C+i}\nv_lshrrev_b32 v{C+i}, 16, v{C+i}')
    A('s_mov_b32 s8, 0\ns_sub_u32 s9, s12, 56\ns_cmp_lt_u32 s9, 56\ns_cselect_b32 s8, 1.0, s8\ns_sub_u32 s9, s12, 224\ns_cmp_lt_u32 s9, 56\ns_cselect_b32 s8, 1.0, s8')
    A(f'v_mov_b32 v{T+17}, s{TAG}\nv_lshrrev_b32 v{T+18}, 1, v{VL}\ns_lshl_b32 s9, s12, 5\ns_add_u32 s9, s9, {MODG}')
    for i in range(7):
        for d in range(4): A(f'v_dot2c_f32_bf16 v{acc+2*d}, v{W+4*i+d}, v{C+i}\nv_dot2c_f32_bf16 v{acc+1+2*d}, v{W+4*i+d}, v{e+i}')
    for i in range(4): A(f'v_permlane32_swap_b32 v{acc+i}, v{acc+4+i}')
    for i in range(4): A(f'v_add_f32 v{acc+i}, v{acc+i}, v{acc+4+i}')
    for i in range(2): A(f'v_permlane16_swap_b32 v{acc+i}, v{acc+2+i}')
    for i in range(2): A(f'v_add_f32 v{acc+i}, v{acc+i}, v{acc+2+i}')
    for r in (8, 4, 2, 1):
        for i in range(2): A(f'v_add_f32_dpp v{acc+i}, v{acc+i}, v{acc+i} row_ror:{r} row_mask:0xf bank_mask:0xf')
    A(f'v_cvt_pk_bf16_f32 v{acc+2}, v{acc}, v{acc+1}\nv_lshlrev_b32 v{acc}, 16, v{acc+2}\nv_and_b32 v{acc+1}, s{sMASK}, v{acc+2}\nv_add_f32 v{acc}, s8, v{acc}\nv_add_f32 v{acc+1}, s8, v{acc+1}\nv_cvt_pk_bf16_f32 v{T+16}, v{acc}, v{acc+1}')
    A(f's_mov_b32 exec_lo, 0x00010001\ns_mov_b32 exec_hi, 0x00010001\nbuffer_store_dwordx2 {v(T+16,2)}, v{T+18}, {srd(WS)}, s9 offen sc1\ns_mov_b64 exec, -1')

def unpack(A, r0, o0):
    for d in range(4):
        r = r0 + d; o = o0 + 2*d
        A(f'v_lshlrev_b32 v{o}, 16, v{r}\nv_and_b32 v{o+1}, s{sMASK}, v{r}')
def tscale(A, o0):
    for d in range(4):
        o = o0 + 2*d
        A(f'v_pk_fma_f32 {v(o,2)}, {v(o,2)}, v[220:221], v[220:221] op_sel:[0,1,0] op_sel_hi:[1,1,0]')

def wkv_m0(ks):
    return (None, HIA + 2048*ks) if ks < 4 else (0, WKV2 + 2048*((ks >> 2) - 1))
def wloc(ks):
    if ks < 4: return 255, 2048*ks
    w = ks & 3; off = WKV2 + 2048*((ks >> 2) - 1)
    return (223, w*XREG + off) if w < 2 else (254, (w-2)*XREG + off)

def phase0_1(A):
    A.stamp('start')
    A(f's_cmp_eq_u32 s{sW}, 0\ns_cbranch_scc1 L_t0\ns_cmp_eq_u32 s{sW}, 1\ns_cbranch_scc1 L_t1\ns_cmp_eq_u32 s{sW}, 2\ns_cbranch_scc1 L_t2')
    A.cbeg()
    A('s_getpc_b64 s[8:9]')
    A.label('L_pc')
    A('s_mov_b32 s10, L_exit-L_pc')
    for i in range(OPT.get('touch', 5)): A(f'v_min_u32 v3, s10, v1\nglobal_load_dword v2, v3, s[8:9]\nv_add_u32 v1, 8192, v1')
    A('s_branch L_tx')
    A.label('L_t1')
    A(f's_lshl_b32 s8, s{sR1}, 4\ns_add_u32 s8, s8, s{sH1}\ns_mul_i32 s8, s8, 7168'); A.setexec(56)
    A(f'buffer_load_dword v2, v1, {srd(X)}, s8 offen\ns_mov_b64 exec, -1\ns_branch L_tx')
    A.label('L_t2')
    A(f's_mul_i32 s8, s2, {37*128}'); A.setexec(37)
    A(f'buffer_load_dword v2, v1, {srd(WQKV)}, s8 offen\ns_mov_b64 exec, -1\ns_branch L_tx')
    A.label('L_t0')
    A('s_cmp_ge_u32 s12, 112\ns_cbranch_scc1 L_tx')
    gemv_loads(A, 8, 40, v, True)
    A.label('L_tx')
    A.cend()
    A(f'v_and_b32 v222, 31, v{VL}\nv_subrev_u32 v223, 4, v222\nv_cmp_gt_u32 vcc, 28, v222\nv_cndmask_b32 v222, v223, v222, vcc\nv_lshlrev_b32 v222, 1, v222\nv_lshrrev_b32 v223, 5, v{VL}')
    A(f'v_mul_u32_u24 v7, 224, v223\nv_add_u32 v222, v222, v7\nv_lshl_add_u32 v223, v223, 20, v222\ns_mul_i32 s8, s{sH1}, 1568')
    for u in range(2):
        for j in range(8):
            off = (16*u + 8*(j >> 2) + (j & 3)) * 56
            A(f'buffer_load_ushort v{224+8*u+j}, v{223 if (u==1 and j>=4) else 222}, {srd(WPHI)}, s8 offen offset:{off}')
    A(f'v_lshrrev_b32 v3, 3, v{VL}\nv_lshrrev_b32 v4, 4, v{VL}\nv_and_b32 v5, 7, v{VL}\nv_xor_b32 v5, v5, v4\nv_lshlrev_b32 v5, 4, v5\nv_mul_u32_u24 v3, 896, v3\nv_add_u32 v250, v3, v5\nv_xor_b32 v251, 64, v250')
    A(f's_lshl_b32 s8, s{sR1}, 2\ns_add_u32 s8, s8, s{sW}\ns_mul_i32 s11, s8, {32*896}')
    xp = lambda G_: [dma((0, 4096*G_+1024*p), 250+(p&1), X, (11, 7168*p+128*G_)) for p in range(4)]
    xt = []
    for G_ in range(2):
        for l in xp(G_): A(l)
        xt.append(A.tok())
    A(f'v_lshrrev_b32 v3, 2, v{VL}\nv_mul_u32_u24 v3, 2688, v3\nv_and_b32 v4, 3, v{VL}\nv_lshl_add_u32 v252, v4, 4, v3')
    A(f's_mul_i32 s10, s{sW}, 43008\ns_mul_i32 s9, s{sH1}, 56\ns_add_u32 s1, s10, s9')
    A(f'v_and_b32 v5, 31, v{VL}\nv_lshrrev_b32 v6, 5, v{VL}\nv_bfe_u32 v7, v{VL}, 1, 3\nv_xor_b32 v6, v6, v7\nv_lshlrev_b32 v5, 7, v5\nv_add_u32 v5, s0, v5')
    for q in range(4): A(f'v_xor_b32 v7, {2*q}, v6\nv_lshl_add_u32 v{240+q}, v7, 4, v5')
    for i in range(4): A(f'v_mov_b32 v{244+i}, 0')
    A(f's_mov_b32 s10, 0\ns_cmp_lg_u32 s{sW}, 0\ns_cbranch_scc1 L_gv2\ns_cmp_ge_u32 s12, 112\ns_cbranch_scc1 L_gv2')
    A.cbeg()
    A('s_waitcnt vmcnt(24)')
    A.stamp('gv_loaded')
    tags(A)
    R = Rec(); gemv_compute(R, 8, 40, 48)
    k = next(i for i, l in enumerate(R.l) if l.startswith('s_mov_b32 exec_lo'))
    A.mix(R.l[:k], sum([xp(G_) for G_ in range(2, 7)], []), OPT.get('gvmix', 6))
    for l in R.l[k:]: A(l)
    A('s_mov_b32 s10, 1')
    A.stamp('gv_pub')
    A.cend()
    A.label('L_gv2')
    def raw(ks): return 8*ks + 4 if ks < 27 else 216
    def proc(A, G_):
        for ks in range(4*G_, 4*G_+4):
            for d in range(4):
                r = raw(ks) + d
                A(f'v_dot2c_f32_bf16 v{244+(d&1)}, s{sONES}, v{r}\nv_dot2c_f32_bf16 v{246+(d&1)}, v{r}, v{r}')
        for ks in range(4*G_, 4*G_+4):
            if ks < 27: unpack(A, raw(ks), 8*ks)
    def wkv_p(i, pat):
        out = []
        for seg in (1, 2):
            m0 = (9, HIA + 1024*(seg-1)) if i == 0 else (0, WKV2 + 2048*(i-1) + 1024*(seg-1))
            out.append(dma(m0, pat, WQKV, (1, 172032*i + 896*seg)))
        return out
    def modld():
        A(f'buffer_load_dwordx2 v[224:225], v232, {srd(WS)}, s2 offen sc1\nbuffer_load_dwordx2 v[226:227], v232, {srd(WS)}, s2 offen offset:1792 sc1')
        A.tmod = A.tok()
        for l in wkv_p(2, 252) + wkv_p(3, 252): A(l)
        A.tkv1 = A.tok()
    for G_ in range(7):
        if G_ + 2 < 7:
            A(f's_cmp_lg_u32 s10, 0\ns_cbranch_scc1 L_xs{G_}')
            for l in xp(G_+2): A(l)
            A.label(f'L_xs{G_}')
            xt.append(A.tok())
        A.wait(xt[G_])
        if G_ == 0: A.stamp('x0')
        if G_ == 6: A.stamp('x_landed')
        for ks in range(4*G_, 4*G_+4): A(f'ds_read_b128 {v(raw(ks),4)}, v{240+(ks&3)} offset:{4096*G_}')
        if G_ == 0:
            tags(A)
            for i in range(8): A(f'v_lshl_or_b32 v{224+2*i}, v{225+2*i}, 16, v{224+2*i}\nv_accvgpr_write_b32 a{96+i}, v{224+2*i}')
            A(f's_mul_i32 s8, s{sW}, 448\ns_add_u32 s2, s8, {MODG}\nv_min_u32 v232, 55, v{VL}\nv_lshlrev_b32 v232, 3, v232\ns_add_u32 s8, s8, {TBL}\nv_add_u32 v233, s8, v232')
        if G_ == 5:
            A(f's_lshl_b32 s9, s{sW}, 11')
            for l in wkv_p(0, 252) + wkv_p(1, 252): A(l)
        if G_ == 6 and OPT.get('modearly', 0): modld()
        if G_ >= 1:
            A('s_waitcnt lgkmcnt(4)'); proc(A, G_-1)
    A('s_waitcnt lgkmcnt(0)')
    proc(A, 6)
    A('v_add_f32 v244, v244, v245\nv_add_f32 v246, v246, v247')
    xhalf(A, 244, 246, 'v_add_f32'); lnstats(A, 244, 246, 245)
    A('v_mul_f32_e64 v220, -v244, v246\nv_mov_b32 v221, v246')
    if not OPT.get('modearly', 0): modld()
    for ks in range(27): tscale(A, 8*ks)
    for i in range(4): A(f'v_accvgpr_write_b32 a{152+i}, v{216+i}')
    A.stamp('t_done')
    A('s_mov_b32 s8, s2')
    prep_setup(A)
    A(f'v_lshrrev_b32 v240, 5, v{VL}\nv_lshlrev_b32 v222, 5, v240\nv_add_u32 v222, {TBL}, v222')
    A(f'v_bfe_u32 v241, v{VL}, 3, 1\nv_lshl_add_u32 v246, v241, 6, v222\nv_and_b32 v241, 7, v{VL}\nv_lshl_add_u32 v246, v241, 2, v246')
    A(f'v_lshlrev_b32 v240, 3, v240\nv_bfe_u32 v241, v{VL}, 2, 2\nv_add_u32 v240, v240, v241\nv_lshlrev_b32 v240, 6, v240\nv_bfe_u32 v241, v{VL}, 4, 1\nv_lshl_add_u32 v240, v241, 5, v240')
    A(f'v_and_b32 v241, 3, v{VL}\nv_lshl_add_u32 v223, v241, 3, v240\nv_mov_b32 v216, v252\nv_mov_b32 v218, v{VL}')
    A.wait(A.tmod)
    A.label('L_s0')
    A(f'v_xor_b32 v225, s{TAG}, v225\nv_xor_b32 v227, s{TAG}, v227\nv_or_b32 v225, v225, v227\nv_cmp_ne_u32 vcc, 0, v225')
    A.spin_check('L_s0x')
    A('s_cbranch_vccz L_s0x')
    A.cbeg()
    A(f'buffer_load_dwordx2 v[224:225], v232, {srd(WS)}, s8 offen sc1\nbuffer_load_dwordx2 v[226:227], v232, {srd(WS)}, s8 offen offset:1792 sc1\ns_waitcnt vmcnt(0)\ns_branch L_s0')
    A.cend()
    A.label('L_s0x')
    A(f'v_and_b32 v225, s{sMASK}, v224\nv_lshlrev_b32 v224, 16, v224\nv_and_b32 v227, s{sMASK}, v226\nv_lshlrev_b32 v226, 16, v226')
    A('ds_write_b64 v233, v[224:225]\nds_write_b64 v233, v[226:227] offset:1792')
    for i in range(4, 7):
        for l in wkv_p(i, 216): A(l)
    A.tkv = A.tok()
    A(f'v_add_u32 v254, {2*XREG}, v223\nv_add_u32 v255, {HIA}, v223')
    A('s_waitcnt lgkmcnt(0)\ns_barrier')
    A.stamp('s0_done')

def prep_setup(A):
    A(f'v_mul_u32_u24 v217, 4682, v{VL}\nv_lshrrev_b32 v217, 16, v217\nv_mul_u32_u24 v240, 14, v217\nv_sub_u32 v240, v{VL}, v240\nv_lshrrev_b32 v241, 2, v217\nv_mul_u32_u24 v217, 3584, v217\nv_lshl_add_u32 v217, v240, 4, v217\nv_lshl_add_u32 v217, v241, 26, v217')
    A(f's_lshl_b32 s14, s{sHI}, 1\ns_add_u32 s14, s14, s{sW}\ns_sub_u32 s14, s14, 2\ns_mul_i32 s14, s14, {16*3584}\ns_mul_i32 s9, s{sLO}, 224\ns_add_u32 s11, s14, s9')
    A(f'v_lshrrev_b32 v219, 3, v{VL}\nv_bfe_u32 v240, v{VL}, 4, 1\nv_lshlrev_b32 v240, 2, v240\nv_and_b32 v241, 7, v{VL}\nv_xor_b32 v240, v240, v241\nv_mul_u32_u24 v219, 896, v219\nv_lshl_add_u32 v219, v240, 4, v219')
    A(f's_lshl_b32 s14, s{sHI}, 1\ns_and_b32 s9, s{sLO}, 1\ns_add_u32 s14, s14, s9\ns_lshl_b32 s14, s14, 1\ns_add_u32 s14, s14, s{sW}\ns_sub_u32 s14, s14, 2\ns_mul_i32 s14, s14, {32*896}\ns_lshr_b32 s9, s{sLO}, 1\ns_lshl_b32 s9, s9, 7\ns_add_u32 s2, s14, s9')
    A(f's_cmp_ge_u32 s{sLO}, 14\ns_cselect_b32 s2, 0x4000000, s2\ns_cmp_ge_u32 s{sW}, 2\ns_cselect_b32 s42, 1, 0\ns_cmp_ge_u32 s{sHI}, 14\ns_cselect_b32 s42, 0, s42')

def prep_pieces(A, j):
    lab = A.newlabel('PP')
    A(f's_cmp_eq_u32 s42, 0\ns_cbranch_scc1 {lab}')
    A.cbeg()
    if j < 4:
        A(dma((0, PSC + 1024*j), 217, WG, (11, 4*3584*j))); A(f's_add_u32 m0, s0, {PSC + 4096 + 1024*j}\ns_nop 0\nbuffer_load_dwordx4 v217, {srd(WU)}, s15 offen lds')
    else:
        for q in (2*(j-4), 2*(j-4)+1): A(dma((0, PSC + 8192 + 1024*q), 219, WD, (2, 7168*q)))
    A.cend(); A.label(lab)

def prep_store(A, t):
    A(f's_mov_b32 s2, 0x4000000\ns_mov_b32 s11, 0x4000000\ns_cmp_eq_u32 s42, 0\ns_cbranch_scc1 L_ps')
    lanebits(A, hl=t, nb=t+1, r=t+2, c=t+3)
    A(f'v_mul_u32_u24 v217, 224, v{t+2}\nv_lshl_add_u32 v217, v{t}, 10, v217\nv_lshl_add_u32 v217, v{t+1}, 12, v217\nv_lshl_add_u32 v217, v{t+3}, 3, v217\nv_add_u32 v217, s0, v217')
    A(f'v_lshl_add_u32 v{t}, v{t}, 2, v{t+2}\nv_lshlrev_b32 v{t}, 7, v{t}\nv_lshl_add_u32 v{t}, v{t+1}, 5, v{t}\nv_lshl_add_u32 v{t}, v{t+3}, 3, v{t}\nv_add_u32 v{t}, s0, v{t}')
    A(f'v_lshrrev_b32 v{t+2}, 1, v{t+2}\nv_lshl_add_u32 v{t+1}, v{t+2}, 6, v{t}\nv_xor_b32 v{t+2}, 1, v{t+2}\nv_lshl_add_u32 v{t+2}, v{t+2}, 6, v{t}')
    A(f's_mul_i32 s8, s{sLO}, 196\ns_lshl_b32 s9, s{sHI}, 1\ns_add_u32 s9, s9, s{sW}\ns_sub_u32 s9, s9, 2\ns_add_u32 s8, s8, s9\ns_lshl_b32 s8, s8, 10\ns_add_u32 s8, s8, {W3P}')
    A(f's_lshl_b32 s9, s9, 2\ns_lshl_b32 s2, s{sLO}, 7\ns_add_u32 s2, s2, s9\ns_add_u32 s2, s2, {FW3}\ns_waitcnt vmcnt(0)')
    for i in range(7):
        for sec in range(2): A(f'ds_read_b64_tr_b16 {a(104+4*i+2*sec,2)}, v217 offset:{PSC+2048*sec+32*i}')
    for k in range(2):
        for nu in range(2):
            for sec in range(2): A(f'ds_read_b64_tr_b16 {a(132+8*k+4*nu+2*sec,2)}, v{t+1+nu} offset:{PSC+8192+(16*k+8*sec)*128}')
    A('s_waitcnt lgkmcnt(8)')
    for i in range(7): A(f'buffer_store_dwordx4 {a(104+4*i,4)}, v246, {srd(WS)}, s8 offen sc1' + ('\ns_add_u32 s8, s8, 28672' if i < 6 else ''))
    A(f's_cmp_ge_u32 s{sLO}, 14\ns_cbranch_scc1 L_ps')
    A(f's_lshl_b32 s8, s{sHI}, 1\ns_and_b32 s9, s{sLO}, 1\ns_add_u32 s8, s8, s9\ns_lshl_b32 s8, s8, 1\ns_add_u32 s8, s8, s{sW}\ns_sub_u32 s8, s8, 2')
    A(f's_lshr_b32 s9, s{sLO}, 1\ns_lshl_b32 s11, s9, 6\ns_add_u32 s11, s11, s8\ns_lshl_b32 s11, s11, 2\ns_add_u32 s11, s11, {FWD}')
    A(f's_lshl_b32 s8, s8, 12\ns_mul_i32 s9, s9, {224*1024}\ns_add_u32 s8, s8, s9\ns_add_u32 s8, s8, {WDP}\ns_waitcnt lgkmcnt(0)')
    for i in range(4): A(f'buffer_store_dwordx4 {a(132+4*i,4)}, v246, {srd(WS)}, s8 offen offset:{1024*i} sc1')
    A.label('L_ps')
    A('s_waitcnt lgkmcnt(0)')

sBG = 14
def bg_run(A, lds0, n):
    A(f's_add_u32 s42, s{sM}, {lds0}\ns_mov_b32 s{sBG}, {n}')
def bg_item(A_, k=1):
    lab = A_.newlabel('BG'); one = f's_cmp_eq_u32 s{sBG}, 0\ns_cbranch_scc1 {lab}\ns_mov_b32 m0, s42\ns_sub_u32 s{sBG}, s{sBG}, 1\nbuffer_load_dwordx4 v246, {srd(WS)}, s43 offen sc1 lds\ns_add_u32 s42, s42, 4096\ns_add_u32 s43, s43, 4096\n'
    return ('BG', one * k, lab)
def bg_emit(A, k=1):
    _, txt, lab = bg_item(A, k)
    A.cbeg(); A(txt); A.cend(); A.label(lab)
def bg_drain(A):
    l = A.newlabel('BD'); o = A.newlabel('BX')
    A.label(l); A.cbeg()
    A(f's_cmp_eq_u32 s{sBG}, 0\ns_cbranch_scc1 {o}\ns_mov_b32 m0, s42\ns_sub_u32 s{sBG}, s{sBG}, 1\nbuffer_load_dwordx4 v246, {srd(WS)}, s43 offen sc1 lds\ns_add_u32 s42, s42, 4096\ns_add_u32 s43, s43, 4096\ns_branch {l}')
    A.cend(); A.label(o)

def w3_tile(i, slot, sb=14):
    return [dma((sM, SLOT[slot] + 4096*p), 246, WS, (sW3, 28672*i + 4096*p), 'sc1') for p in range(7)]
sM = 12
sW3 = 1
sWD = 0

def wd_items(lo, hi):
    out = []
    for n in range(lo, hi):
        out.append(f's_add_u32 s15, s{sWD}, {1024*n}\nbuffer_load_dwordx4 {a(4*n,4)}, v246, {srd(WS)}, s15 offen sc1')
    return out

def p1_kv(A):
    WB = 48
    def sa_rd(ks):
        tb = 224 + 8*(ks & 1)
        return [f'ds_read_b128 {v(tb,4)}, v222 offset:{64*ks}', f'ds_read_b128 {v(tb+4,4)}, v222 offset:{64*ks+16}']
    def w_rd(ks):
        r, b = wloc(ks); wb = WB + 8*(ks % 3)
        return [f'ds_read_b64_tr_b16 {a(wb+4*n+2*sec,2)}, v{r} offset:{b+256*sec+1024*n}' for n in range(2) for sec in range(2)]
    def toff(ks): return 8*ks if ks < 27 else 112
    def mf(ks):
        wb = WB + 8*(ks % 3); h = v(4*ks, 4)
        c = lambda b: '0' if ks == 0 else a(b, 16)
        return [f'{MFMA} {a(0,16)}, {a(wb,4)}, {h}, {c(0)}', f'{MFMA} {a(16,16)}, {h}, {a(wb+4,4)}, {c(16)}']
    order = [i for i in range(14) if i != 6] + [6]
    for l in sa_rd(0): A(l)
    for i in order: A(f'ds_read_b32 v{240+i}, v246 offset:{1792+128*i}')
    for l in w_rd(0): A(l)
    for ks in range(29):
        tb = 224 + 8*(ks & 1); o = toff(ks) if ks < 28 else 0
        sr = sa_rd(ks+1) if ks + 1 < 28 else []
        wr = w_rd(ks+1) if ks + 1 < 28 else []
        m = mf(ks-1) if ks >= 1 else ['', '']
        if OPT.get('fine') and ks in (3, 11, 15, 18, 22, 23): A.stamp(f'k{ks}')
        if ks == 15:
            A.wait(A.tkv); A('s_barrier')
            if OPT.get('fine'): A.stamp('k15b')
        if ks == 0: A(f's_lshl_b32 s10, s{sW}, 10')
        if ks == 10: A.tkv = A.tok()
        if 16 <= ks < 22: prep_pieces(A, ks - 16)
        if ks == 7:
            A.wait(A.tkv1); A('s_barrier')
        if ks == 22:
            A(f's_lshl_b32 s8, s{sHI}, 4\ns_add_u32 s8, s8, s{sLO}\ns_and_b32 s8, s8, 31\ns_lshl_b32 s8, s8, 1\ns_add_u32 s8, s8, s{sW}\ns_sub_u32 s8, s8, 2\ns_mul_i32 s8, s8, {49*128}')
            A(f's_cmp_lt_u32 s{sW}, 2\ns_cselect_b32 s8, 0x4000000, s8\nv_lshlrev_b32 v122, 7, v218\nbuffer_load_dword a200, v122, {srd(WO)}, s8 offen')
        if ks == 26:
            for i in range(4): A(f'v_accvgpr_read_b32 v{116+i}, a{152+i}')
            unpack(A, 116, 112); tscale(A, 112)
        if ks == 28:
            A('s_waitcnt lgkmcnt(0)')
            for l in m: A(l)
            break
        fm = [f'v_fmac_f32_dpp v{tb+j}, v{240+(ks>>1)}, v{o+j} row_newbcast:{8*(ks&1)+j} row_mask:0xf bank_mask:0xf' for j in range(8)]
        cv = [f'v_cvt_pk_bf16_f32 v{4*ks+i}, v{tb+2*i}, v{tb+2*i+1}' for i in range(4)]
        A('s_waitcnt lgkmcnt(4)')
        extra = [dma((10, WQL + 4096*(ks-3)), 216, WQKV, (1, 172032*(ks-3)))] if 3 <= ks < 10 else []
        for l in [m[0]] + sr + wr[0:1] + fm[0:6] + [m[1]] + wr[1:4] + extra + fm[6:8] + cv: A(l)
    lane_restore(A)
    A.stamp('kv_gemm')
    for i in range(16): A(f'v_accvgpr_read_b32 v{112+i}, a{i}')
    for i in range(8): A(f'v_cvt_pk_bf16_f32 v{128+i}, v{112+2*i}, v{113+2*i}')
    A(f'{MFMA} {v(136,16)}, {a(96,4)}, {v(128,4)}, 0\n{MFMA} {v(136,16)}, {a(100,4)}, {v(132,4)}, {v(136,16)}')
    for i in range(16): A(f'v_accvgpr_read_b32 v{152+i}, a{16+i}')
    for i in range(8): A(f'v_cvt_pk_bf16_f32 v{168+i}, v{152+2*i}, v{153+2*i}')
    A('s_mov_b32 exec_lo, 0x10000000\ns_mov_b32 exec_hi, 0x10000000')
    for i in range(8): A(f'v_mov_b32 v{168+i}, s{sONES}')
    A(f's_mov_b64 exec, -1\ns_lshl_b32 s8, s{sW}, 11\ns_add_u32 s8, s8, {VFR}\nv_lshl_add_u32 v244, v{VL}, 4, s8')
    A('s_barrier')
    A(f'ds_write_b128 v244, {v(168,4)}\nds_write_b128 v244, {v(172,4)} offset:1024')
    A(f'v_and_b32 v244, 1, v{VL}\nv_bfe_u32 v245, v{VL}, 1, 1\nv_lshl_or_b32 v244, v245, 3, v244\nv_bfe_u32 v245, v{VL}, 3, 1\nv_lshl_or_b32 v244, v245, 2, v244')
    A(f'v_bfe_u32 v245, v{VL}, 2, 1\nv_lshl_or_b32 v244, v245, 1, v244\nv_lshrrev_b32 v245, 5, v{VL}\nv_xor_b32 v244, v244, v245')
    A(f'v_and_b32 v245, 31, v{VL}\nv_lshlrev_b32 v245, 7, v245\ns_lshl_b32 s8, s{sW}, 12\ns_add_u32 s8, s8, {PHI}\nv_add_u32 v245, s8, v245')
    softmax2(A, 136, 152, 176, 192, 208)
    for sg_ in range(2):
        for g in range(4):
            A(f'v_xor_b32 v246, {sg_*8+2*g}, v244\nv_lshl_add_u32 v246, v246, 3, v245\nds_write_b64 v246, {v(192+8*sg_+2*g,2)}')
    A(f'v_lshlrev_b32 v246, 4, v{VL}\ns_waitcnt lgkmcnt(0)\ns_barrier')
    A.stamp('phik')
    A(f's_cmp_ge_u32 s{sW}, 2\ns_cbranch_scc1 L_kv_skip')
    A.cbeg()
    A(f's_add_u32 s2, s12, 112\ns_cmp_lg_u32 s{sW}, 1\ns_cselect_b32 s2, 999, s2')
    A(f'v_lshrrev_b32 v244, 5, v{VL}\nv_bfe_u32 v245, v{VL}, 2, 2\nv_lshl_add_u32 v243, v244, 2, v245\nv_lshlrev_b32 v243, 7, v243\nv_add_u32 v243, {PHI}, v243')
    A(f'v_lshlrev_b32 v244, 1, v244\nv_bfe_u32 v245, v{VL}, 2, 1\nv_or_b32 v244, v244, v245\nv_bfe_u32 v245, v{VL}, 3, 1\nv_lshl_or_b32 v244, v245, 3, v244')
    A(f'v_bfe_u32 v245, v{VL}, 4, 1\nv_lshlrev_b32 v245, 2, v245\nv_and_b32 v247, 3, v{VL}\nv_or_b32 v245, v245, v247\ns_lshl_b32 s8, s{sW}, 3\nv_or_b32 v245, s8, v245\nv_xor_b32 v244, v244, v245')
    A(f'v_lshl_add_u32 v245, v244, 3, v243\nv_xor_b32 v244, 4, v244\nv_lshl_add_u32 v244, v244, 3, v243\nv_add_u32 v243, {VFR}, v246')
    for tau in range(4):
        for u in range(2):
            i = tau*2 + u
            A(f'ds_read_b64_tr_b16 {v(112+4*i,2)}, v245 offset:{tau*4096+2048*u}\nds_read_b64_tr_b16 {v(114+4*i,2)}, v244 offset:{tau*4096+2048*u+1024}')
            A(f'ds_read_b128 {v(144+4*i,4)}, v243 offset:{tau*2048+u*1024}')
    A(f's_lshl_b32 s8, s{sH1}, 4\ns_add_u32 s8, s8, s{sR1}\ns_lshl_b32 s8, s8, 12\ns_lshl_b32 s9, s{sW}, 11\ns_add_u32 s8, s8, s9\ns_add_u32 s8, s8, {KVP}')
    A(f's_lshl_b32 s10, s{sH1}, 1\ns_add_u32 s10, s10, s{sW}\ns_lshl_b32 s10, s10, 7\ns_lshl_b32 s9, s{sR1}, 2\ns_add_u32 s10, s10, s9\ns_add_u32 s10, s10, {FA}')
    for i in range(8):
        A(f's_waitcnt lgkmcnt({min(15, 21-3*i)})')
        A(f'{MFMA} {v(176,16)}, {v(112+4*i,4)}, {v(144+4*i,4)}, {"0" if i == 0 else v(176,16)}')
    for i in range(8): A(f'v_cvt_pk_bf16_f32 v{192+i}, v{176+2*i}, v{177+2*i}')
    A(f'buffer_store_dwordx4 {v(192,4)}, v246, {srd(WS)}, s8 offen sc1\nbuffer_store_dwordx4 {v(196,4)}, v246, {srd(WS)}, s8 offen offset:1024 sc1')
    qpass(A, OPT.get('kvf', 14))
    A('s_branch L_kv_j')
    A.label('L_kv_skip')
    prep_store(A, 240)
    qpass(A)
    A('s_waitcnt vmcnt(0)'); A.flag('s2', TAG+5, 244); A.flag('s11', TAG+5, 244)

    A.label('L_kv_j')
    A.cend()

def qpass(A, flag_at=None):
    WB = 48
    def reads(ks):
        wb = WB + 4*(ks % 6)
        for sec in range(2): A(f'ds_read_b64_tr_b16 {a(wb+2*sec,2)}, v222 offset:{WQL-HIA+1024*ks+256*sec}')
    lanebits(A, hl=222, nb=223, r=224, c=225)
    A(f'v_lshl_add_u32 v222, v222, 3, v224\nv_lshlrev_b32 v222, 6, v222\nv_lshl_add_u32 v222, v223, 5, v222\nv_lshl_add_u32 v222, v225, 3, v222\nv_add_u32 v222, {HIA}, v222')
    for ks in range(4): reads(ks)
    for ks in range(28):
        A(f's_waitcnt lgkmcnt({2*min(3, 27-ks)})')
        A(f'{MFMA} {v(112,16)}, {a(WB+4*(ks%6),4)}, {v(4*ks,4)}, {"0" if ks == 0 else v(112,16)}')
        if ks + 4 < 28: reads(ks+4)
        if ks == flag_at:
            A('s_waitcnt vmcnt(0)'); A.flag('s10', TAG+1, 244); A.stamp('kv_pub')
            A(f's_cmp_ge_u32 s2, 336\ns_cbranch_scc1 L_dg1')
            A('s_mov_b32 s12, s2'); gemv_loads(A, 144, 172, a, True, 240)
            A.label('L_dg1')

def wo_items():
    return [dma((sM, 4096*i), 247, WO, (11, 4*7168*i)) for i in range(14)]

def window_q(A):
    A(f's_lshl_b32 s{sM}, s{sW}, 10\ns_mul_i32 s{sW3}, s{sLO}, {196*1024}\ns_add_u32 s{sW3}, s{sW3}, s{sM}\ns_add_u32 s{sW3}, s{sW3}, {W3P}')
    A(f's_lshr_b32 s8, s{sLO}, 1\ns_min_u32 s9, s8, 6\ns_mul_i32 s{sWD}, s9, {224*1024}\ns_mul_i32 s9, s{sW}, {56*1024}\ns_add_u32 s{sWD}, s{sWD}, s9\ns_add_u32 s{sWD}, s{sWD}, {WDP}')
    A(f's_lshl_b32 s11, s8, 7\ns_mul_i32 s9, s{sW}, 7168\ns_add_u32 s11, s11, s9')
    A(f's_cmp_ge_u32 s{sLO}, 14\ns_cselect_b32 s11, 0x4000000, s11')
    A(f'v_lshrrev_b32 v247, 3, v{VL}\nv_bfe_u32 v245, v{VL}, 4, 1\nv_lshlrev_b32 v245, 2, v245\nv_and_b32 v244, 7, v{VL}\nv_xor_b32 v245, v245, v244\nv_mul_u32_u24 v247, 896, v247\nv_lshl_add_u32 v247, v245, 4, v247')
    R = Rec()
    for i in range(8): R(f'v_cvt_pk_bf16_f32 v{128+i}, v{112+2*i}, v{113+2*i}')
    R(f'{MFMA} {v(136,16)}, {a(96,4)}, {v(128,4)}, 0\n{MFMA} {v(136,16)}, {a(100,4)}, {v(132,4)}, {v(136,16)}')
    softmax2(R, 136, 152, 176, 192, 208)
    A.mix(R.l, wo_items(), OPT.get('mixq', 7))
    A(f's_cmp_lg_u32 s{sW}, 1\ns_cbranch_scc1 L_dg2\ns_cmp_ge_u32 s2, 336\ns_cbranch_scc1 L_dg2')
    A.cbeg()
    A('s_waitcnt vmcnt(14)\ns_mov_b32 s12, s2')
    for i in range(35): A(f'v_accvgpr_read_b32 v{i}, a{144+i}')
    gemv_compute(A, 0, 28, 36)
    A(f's_lshl_b32 s{sM}, s{sW}, 10')
    A.cend()
    A.label('L_dg2')
    A(f's_mov_b32 s43, s{sW3}'); bg_run(A, SLOT[0], 21)
    A.stamp('phiq')

def p2a(A):
    A(f's_lshr_b32 s8, s{sW}, 1\ns_lshl_b32 s9, s{sH1}, 1\ns_add_u32 s8, s8, s9\ns_lshl_b32 s8, s8, 7\ns_add_u32 s8, s8, {FA}\nv_lshlrev_b32 v244, 2, v{VL}')
    A.poll(16, 244, 's8', TAG+1, 245)
    A.stamp('sa_flag')
    A(f's_lshl_b32 s8, s{sH1}, 16\ns_add_u32 s8, s8, s{sM}\ns_add_u32 s8, s8, {KVP}')
    tk = []
    for p in range(16):
        A(f'buffer_load_dwordx4 {v(4*p,4)}, v246, {srd(WS)}, s8 offen sc1'); tk.append(A.tok())
        if p < 15: A('s_add_u32 s8, s8, 4096')
    A('s_mov_b32 s10, 0x00003f80\ns_mov_b32 s11, 0x3f800000')
    for i in range(8): A(f'v_mov_b32 v{64+i}, 0')
    for p in range(16):
        A.wait(tk[p])
        for d in range(4): A(f'v_dot2c_f32_bf16 v{64+2*d}, s10, v{4*p+d}\nv_dot2c_f32_bf16 v{65+2*d}, s11, v{4*p+d}')
    for d in range(4): A(f'v_cvt_pk_bf16_f32 v{72+d}, v{64+2*d}, v{65+2*d}')
    A(f'v_add_u32 v245, {KVS}, v246\nv_add_u32 v244, s{sM}, v245\nds_write_b128 v244, v[72:75]\ns_waitcnt lgkmcnt(0)\ns_barrier')
    for i in range(4): A(f'ds_read_b128 {v(76+4*i,4)}, v245 offset:{1024*i}')
    A(f's_lshl_b32 s8, s{sR1}, 2\ns_add_u32 s9, s8, s{sW}\ns_lshl_b32 s8, s9, 4\ns_add_u32 s8, s8, s{sH1}\ns_lshl_b32 s8, s8, 11\ns_add_u32 s8, s8, {OF}')
    A(f's_lshl_b32 s9, s9, 7\ns_lshl_b32 s10, s{sH1}, 2\ns_add_u32 s9, s9, s10\ns_add_u32 s9, s9, {FB}')
    for i in range(4):
        A(f's_waitcnt lgkmcnt({3-i})\n{MFMA} {v(96,16)}, {v(76+4*i,4)}, {v(192+4*i,4)}, {"0" if i == 0 else v(96,16)}')
    A('v_mov_b32 v112, v108\nv_mov_b32 v114, v108\nv_permlane32_swap_b32 v112, v114\nv_add_f32 v114, 0x358637bd, v114\nv_rcp_f32 v114, v114')
    for i in range(8): A(f'v_pk_mul_f32 {v(96+2*i,2)}, {v(96+2*i,2)}, v[114:115] op_sel_hi:[1,0]')
    for i in range(8): A(f'v_cvt_pk_bf16_f32 v{224+i}, v{96+2*i}, v{97+2*i}')
    A(f's_mov_b64 exec, {s(sUP,2)}\nv_mov_b32 v230, 0\nv_mov_b32 v231, 0\ns_mov_b64 exec, -1')
    A(f'buffer_store_dwordx4 v[224:227], v246, {srd(WS)}, s8 offen sc1\nbuffer_store_dwordx4 v[228:231], v246, {srd(WS)}, s8 offen offset:1024 sc1')
    A(f's_lshl_b32 s8, s{sLO}, 7\ns_add_u32 s8, s8, {FW3}\nv_min_u32 v244, 27, v{VL}\nv_lshlrev_b32 v244, 2, v244\nbuffer_load_dword v245, v244, {srd(WS)}, s8 offen sc1')
    wo_read(A)
    A('s_waitcnt vmcnt(0)')
    A.flag('s9', TAG+2, 243)
    A.stamp('o_pub')
    A(f'v_cmp_ne_u32 vcc, s{TAG+5}, v245\ns_cbranch_vccz L_fw3')
    A.cbeg(); A.poll(28, 244, 's8', TAG+5, 245); A.cend()
    A.label('L_fw3')

def wo_read(A):
    lanebits(A, hl=240, nb=241, r=242, c=243)
    A(f'v_lshl_add_u32 v240, v240, 2, v242\nv_lshlrev_b32 v240, 7, v240\nv_lshl_add_u32 v240, v241, 5, v240\nv_lshl_add_u32 v240, v243, 3, v240')
    A(f'v_lshrrev_b32 v242, 1, v242\ns_and_b32 s10, s{sW}, 1\nv_xor_b32 v242, s10, v242\nv_lshl_add_u32 v240, v242, 6, v240')
    for h in range(16):
        for u in range(2):
            for sec in range(2):
                A(f'ds_read_b64_tr_b16 {v(8*h+4*u+2*sec,2)}, v240 offset:{(28*h+16*u+8*sec)*128}')

def modvec_ld(A, part, ncol_s, dst, voff):
    A(f's_lshl_b32 s10, s{ncol_s}, 2\ns_add_u32 s10, s10, {MODG+part*1792}')
    for g in range(4): A(f'buffer_load_dwordx4 {v(dst+4*g,4)}, v{voff}, {srd(WS)}, s10 offen offset:{32*g} sc1')

def modvecs(A, parts, ncol_s, voff, tmp, lab):
    A.label(lab)
    for part, dst in parts: modvec_ld(A, part, ncol_s, dst, voff)
    A(f's_waitcnt vmcnt(0)\nv_mov_b32 v{tmp}, 0')
    for part, dst in parts:
        for g in range(8): A(f'v_xor_b32 v{dst+2*g+1}, s{TAG}, v{dst+2*g+1}')
        for g in range(0, 8, 2): A(f'v_or3_b32 v{tmp}, v{tmp}, v{dst+2*g+1}, v{dst+2*g+3}')
    A(f'v_cmp_ne_u32 vcc, 0, v{tmp}')
    A.spin_check(lab + 'x')
    A(f's_cbranch_vccnz {lab}')
    A.label(lab + 'x')

def aext(A):
    A(f's_lshl_b32 s8, s{sHI}, 1\ns_add_u32 s8, s8, s{sLO}\ns_sub_u32 s8, s8, 14\ns_lshl_b32 s8, s8, 2\ns_add_u32 s11, s8, s{sW}\ns_cmp_ge_u32 s11, 112\ns_cbranch_scc1 L_ax_done')
    A(f's_mul_i32 s8, s11, 9363\ns_lshr_b32 s8, s8, 16\ns_lshl_b32 s8, s8, 7\ns_add_u32 s8, s8, {FW3}\nv_lshlrev_b32 v244, 2, v{VL}')
    A.poll(28, 244, 's8', TAG+5, 245)
    A(f's_mul_i32 s8, s11, 28672\ns_add_u32 s8, s8, {W3P}')
    for ks in range(28): A(f'buffer_load_dwordx4 {v(4*ks,4)}, v246, {srd(WS)}, s8 offen offset:{1024*(ks&3)} sc1' + ('\ns_add_u32 s8, s8, 4096' if ks & 3 == 3 else ''))
    A(f'v_lshlrev_b32 v244, 3, v{VL}\nv_and_b32 v240, 0x39, v{VL}\nv_bfe_u32 v241, v{VL}, 1, 1\nv_lshl_or_b32 v240, v241, 2, v240\nv_bfe_u32 v241, v{VL}, 2, 1\nv_lshl_or_b32 v240, v241, 1, v240')
    A(f's_lshl_b32 s9, s{sM}, 2\nv_lshl_add_u32 v245, v240, 2, s9\ns_mov_b32 s8, {MODG+3*1792}')
    A.label('L_ax_p')
    for i in range(4):
        A(f'buffer_load_dwordx2 {v(112+2*i,2)}, v244, {srd(WS)}, s8 offen offset:{1792+512*i} sc1\nbuffer_load_dwordx2 {v(120+2*i,2)}, v244, {srd(WS)}, s8 offen offset:{512*i} sc1')
    A('s_waitcnt vmcnt(0)\nv_mov_b32 v128, 0')
    for i in range(8): A(f'v_xor_b32 v{113+2*i}, s{TAG}, v{113+2*i}\nv_or_b32 v128, v128, v{113+2*i}')
    A('v_cmp_ne_u32 vcc, 0, v128')
    A.spin_check('L_ax_px')
    A('s_cbranch_vccnz L_ax_p')
    A.label('L_ax_px')
    for i in range(3): A(f'ds_write_b32 v245, v{112+2*i} offset:{256*i}\nds_write_b32 v245, v{120+2*i} offset:{896+256*i}')
    A(f's_mov_b32 exec_hi, 0\nds_write_b32 v245, v118 offset:768\nds_write_b32 v245, v126 offset:{896+768}\ns_mov_b64 exec, -1')
    A(f'v_and_b32 v240, 1, v{VL}\nv_mul_u32_u24 v240, 896, v240\nv_lshrrev_b32 v241, 5, v{VL}\nv_lshl_add_u32 v240, v241, 4, v240\nv_add_u32 v240, s9, v240\ns_waitcnt lgkmcnt(0)')
    for half in range(2):
        for k in range(14): A(f'ds_read_b128 {v(128+4*k,4)}, v240 offset:{32*(half*14+k)}')
        A('s_waitcnt lgkmcnt(0)')
        for k in range(14): A(f'{MFMA} {v(112,16)}, {v(4*(half*14+k),4)}, {v(128+4*k,4)}, {"0" if half == 0 and k == 0 else v(112,16)}')
    A(f'v_and_b32 v240, 1, v{VL}\nv_lshlrev_b32 v240, 7, v240\nv_lshl_add_u32 v240, v241, 4, v240\nv_add_u32 v240, s9, v240')
    A('s_mov_b32 exec_lo, 3\ns_mov_b32 exec_hi, 3')
    for g in range(4): A(f'ds_write_b128 v240, {v(112+4*g,4)} offset:{2048+32*g}')
    A(f's_mov_b64 exec, -1\nv_and_b32 v240, 31, v{VL}\nv_lshl_add_u32 v240, v240, 2, s9\ns_waitcnt lgkmcnt(0)\nds_read_b32 v130, v240 offset:2048\nds_read_b32 v131, v240 offset:2176\ns_waitcnt lgkmcnt(0)')
    for x_, o in ((130, 132), (131, 133)):
        A(f'v_cvt_pk_bf16_f32 v136, v{x_}, v{x_}\nv_and_b32 v136, s{sMASK}, v136\nv_sub_f32 v137, v{x_}, v136\nv_cvt_pk_bf16_f32 v{o}, v136, v137')
    A(f'v_mov_b32 v134, 0\nv_mov_b32 v135, s{TAG+6}\ns_mov_b64 exec, {s(sUP,2)}\nv_mov_b32 v132, 0\nv_mov_b32 v133, 0\ns_mov_b64 exec, -1')
    A(f's_lshl_b32 s8, s11, 10\ns_add_u32 s8, s8, {AEXT}\nbuffer_store_dwordx4 v[132:135], v246, {srd(WS)}, s8 offen sc1')
    A.label('L_ax_done')

GA, C1B, XR_, GB, X1K = 144, 160, 176, 224, 232

def p2b(A):
    A('s_waitcnt lgkmcnt(0)\ns_barrier')
    bg_emit(A, OPT.get('bgB0', 3))
    A(f's_cmp_ge_u32 s{sLO}, 14\ns_cbranch_scc1 L_p2b_alt')
    A.cbeg()
    A(f's_and_b32 s8, s{sLO}, 1\ns_lshl_b32 s8, s8, 1\ns_lshr_b32 s9, s{sW}, 1\ns_add_u32 s8, s8, s9\ns_lshl_b32 s2, s{sHI}, 2\ns_add_u32 s2, s2, s8')
    A(f's_and_b32 s8, s{sLO}, 14\ns_and_b32 s9, s{sW}, 1\ns_add_u32 s8, s8, s9\ns_lshl_b32 s11, s8, 5')
    A(f'v_lshrrev_b32 v244, 5, v{VL}\nv_lshlrev_b32 v245, 4, v244\nv_and_b32 v243, 31, v{VL}\nv_mul_u32_u24 v243, 896, v243\nv_lshl_add_u32 v243, v244, 3, v243')
    A(f's_mul_i32 s8, s2, 28672\ns_lshl_b32 s9, s11, 1\ns_add_u32 s8, s8, s9')
    for g in range(4): A(f'buffer_load_dwordx2 {v(XR_+4*g,2)}, v243, {srd(X)}, s8 offen offset:{16*g}')
    modvecs(A, [(2, GA), (4, C1B), (5, 192)], 11, 245, 243, 'L_mv')
    for b0 in (GA, C1B):
        for q in range(8): A(f'v_and_b32 v{b0+2*q+1}, s{sMASK}, v{b0+2*q}\nv_lshlrev_b32 v{b0+2*q}, 16, v{b0+2*q}')
    for q in range(8): A(f'v_mov_b32 v{GB+q}, v{192+2*q}')
    for g in range(4):
        b = XR_ + 4*g
        A(f'v_and_b32 v{b+3}, s{sMASK}, v{b+1}\nv_lshlrev_b32 v{b+2}, 16, v{b+1}\nv_and_b32 v{b+1}, s{sMASK}, v{b}\nv_lshlrev_b32 v{b}, 16, v{b}')
    A(f's_lshr_b32 s8, s{sLO}, 1\ns_lshl_b32 s8, s8, 8\ns_add_u32 s8, s8, {FWD}\nv_lshlrev_b32 v244, 2, v{VL}')
    A.poll(56, 244, 's8', TAG+5, 245)
    nb = OPT.get('wdB', 0)
    for l in wd_items(0, nb): A(l)
    A(f's_lshl_b32 s8, s2, 7\ns_and_b32 s9, s{sW}, 1\ns_lshl_b32 s10, s9, 5\ns_add_u32 s8, s8, s10\ns_add_u32 s8, s8, {FB}')
    A.poll(8, 244, 's8', TAG+2, 245, bg=OPT.get('bgB', 3))
    A.stamp('sb_flag')
    A(f's_lshl_b32 s8, s2, 15\ns_lshl_b32 s9, s9, 14\ns_add_u32 s8, s8, s9\ns_add_u32 s8, s8, {OF}\ns_lshl_b32 s9, s{sW}, 14')
    for p in range(16): A(dma((9, 1024*p), 246, WS, (8, 1024*p), 'sc1'))
    A(f's_lshr_b32 s8, s{sW}, 1\ns_lshl_b32 s8, s8, 15\nv_add_u32 v247, s8, v246\ns_waitcnt vmcnt(0)\ns_barrier')
    def rd(k): return f'ds_read_b128 {v(192+4*(k%8),4)}, v247 offset:{1024*k}'
    for k in range(6): A(rd(k))
    bg = wd_items(nb, nb + OPT.get('wdM', 10)); nb += OPT.get('wdM', 10)
    for k in range(32):
        A(f's_waitcnt lgkmcnt({min(5, 31-k)})\n{MFMA} {v(128,16)}, {v(4*k,4)}, {v(192+4*(k%8),4)}, {"0" if k == 0 else v(128,16)}')
        if k + 6 < 32: A(rd(k+6))
        if k % 3 == 1 and bg: A(bg.pop(0))
    assert not bg
    A('s_barrier')
    for i in range(8): A(f'v_pk_fma_f32 {v(128+2*i,2)}, {v(128+2*i,2)}, {v(GA+2*i,2)}, {v(XR_+2*i,2)}')
    for i in range(8): A(f'v_cvt_pk_bf16_f32 v{X1K+i}, v{128+2*i}, v{129+2*i}')
    A('v_mov_b32 v208, 0\nv_mov_b32 v210, 0')
    for i in range(8): A(f'v_lshlrev_b32 v{128+2*i}, 16, v{X1K+i}\nv_and_b32 v{129+2*i}, s{sMASK}, v{X1K+i}')
    for i in range(8): A(f'v_pk_mul_f32 {v(128+2*i,2)}, {v(128+2*i,2)}, {v(C1B+2*i,2)}')
    for i in range(8): A(f'v_cvt_pk_bf16_f32 v{200+i}, v{128+2*i}, v{129+2*i}')
    A(f's_lshr_b32 s8, s11, 5\ns_mul_i32 s10, s2, 28\ns_lshl_b32 s9, s8, 1\ns_add_u32 s10, s10, s9\ns_lshl_b32 s10, s10, 10\ns_add_u32 s10, s10, {YF}')
    A(f'buffer_store_dwordx4 v[200:203], v246, {srd(WS)}, s10 offen sc1\nbuffer_store_dwordx4 v[204:207], v246, {srd(WS)}, s10 offen offset:1024 sc1')
    for i in range(8): A(f'v_dot2c_f32_bf16 v208, s{sONES}, v{X1K+i}\nv_dot2c_f32_bf16 v210, v{X1K+i}, v{X1K+i}')
    xhalf(A, 208, 210, 'v_add_f32')
    A(f'v_mov_b32 v209, v210\ns_lshl_b32 s9, s2, 4\ns_add_u32 s9, s9, s8\ns_lshl_b32 s9, s9, 8\ns_add_u32 s9, s9, {STAT}\nv_lshlrev_b32 v244, 3, v{VL}')
    A(f's_mov_b32 exec_hi, 0\nbuffer_store_dwordx2 v[208:209], v244, {srd(WS)}, s9 offen sc1\ns_mov_b64 exec, -1')
    A(f's_lshl_b32 s8, s8, 2\ns_lshl_b32 s9, s2, 7\ns_add_u32 s8, s8, s9\ns_add_u32 s8, s8, {FC}\ns_waitcnt vmcnt(0)')
    A.flag('s8', TAG+3, 244)
    A(f's_or_b32 s8, s{sHI}, s{sLO}\ns_or_b32 s8, s8, s{sW}\ns_cmp_lg_u32 s8, 0\ns_cbranch_scc1 L_p2b_j\ns_add_u32 s8, s{sE}, 1\nv_mov_b32 v244, s8\ns_mov_b64 exec, 1\nbuffer_store_dword v244, v254, {srd(WS)}, 0 offen sc1\ns_mov_b64 exec, -1')
    A('s_branch L_p2b_j')
    A.label('L_p2b_alt')
    aext(A)
    A(f's_barrier\ns_barrier')
    A.label('L_p2b_j')
    A.cend()
    A.nwd = nb
    A.stamp('y_pub')

def p3(A):
    AX = 224
    bg_drain(A); bg_run(A, SLOT[3], 14); bg_emit(A, OPT.get('bgC0', 3))
    A(f's_mul_i32 s8, s{sLO}, 7168\ns_add_u32 s8, s8, {AEXT}\ns_add_u32 s9, s8, 4096')
    A.label('L_ae')
    for i in range(7): A(f'buffer_load_dwordx4 {v(4*i,4)}, v246, {srd(WS)}, s{8 if i < 4 else 9} offen offset:{1024*(i&3)} sc1')
    A('s_waitcnt vmcnt(0)\nv_mov_b32 v28, 0')
    for i in range(7): A(f'v_xor_b32 v{4*i+3}, s{TAG+6}, v{4*i+3}\nv_or_b32 v28, v28, v{4*i+3}')
    A('v_cmp_ne_u32 vcc, 0, v28')
    A.spin_check('L_aex')
    A('s_cbranch_vccnz L_ae')
    A.label('L_aex')
    for i in range(28): A(f'v_accvgpr_write_b32 a{AX+i}, v{i}')
    A(f'v_add_u32 v240, 65536, v246\nv_add_u32 v241, 122880, v246')
    A(f's_lshl_b32 s14, s{sHI}, 2\ns_add_u32 s14, s14, s{sW}\ns_lshl_b32 s8, s14, 7\ns_add_u32 s8, s8, {FC}\nv_lshlrev_b32 v244, 2, v{VL}' .replace('s14', 's11'))
    A(f'v_and_b32 v242, 31, v{VL}\nv_lshrrev_b32 v243, 5, v{VL}\nv_lshlrev_b32 v242, 3, v242\nv_mul_u32_u24 v243, 1792, v243\nv_add_u32 v242, v242, v243')
    A('s_barrier')
    nb = A.nwd
    for l in wd_items(nb, nb + OPT.get('wdC', 0)): A(l)
    nb += OPT.get('wdC', 0)
    A.poll(14, 244, 's8', TAG+3, 245, bg=OPT.get('bgC', 3))
    A.stamp('sc_flag')
    A(f's_lshl_b32 s8, s11, 12\ns_add_u32 s8, s8, {STAT}')
    for i in range(7): A(f'buffer_load_dwordx2 {v(112+2*i,2)}, v242, {srd(WS)}, s8 offen offset:{256*i} sc1')
    tst = A.tok()
    A(f's_mul_i32 s8, s11, 28672\ns_add_u32 s8, s8, {YF}')
    ty = []
    for ks in range(28):
        A(f'buffer_load_dwordx4 {v(4*ks,4)}, v246, {srd(WS)}, s8 offen offset:{1024*(ks&3)} sc1'); ty.append(A.tok())
        if ks & 3 == 3 and ks < 27: A('s_add_u32 s8, s8, 4096')
        if ks == 7:
            A.wait(tst)
            for i in range(1, 7): A(f'v_pk_add_f32 v[112:113], v[112:113], {v(112+2*i,2)}')
            A('v_mov_b32 v114, v113')
            xhalf(A, 112, 114, 'v_add_f32'); lnstats(A, 112, 114, 113)
            A(f'v_mul_f32 v248, v114, v114\nv_xor_b32 v112, 0x80000000, v112\ns_mov_b32 s9, 0x07060706\nv_perm_b32 v212, v112, v112, s9\nv_perm_b32 v213, v113, v113, s9\nv_mov_b32 v214, 0\nv_mov_b32 v215, 0')
    A(f's_mul_i32 s8, s11, 112\ns_mul_i32 s9, s{sLO}, 7\ns_add_u32 s8, s8, s9\ns_lshl_b32 s8, s8, 10\ns_add_u32 s8, s8, {HH}\ns_add_u32 s9, s8, 4096')
    A(f's_lshl_b32 s10, s{sHI}, 2\ns_lshr_b32 s11, s{sLO}, 2\ns_add_u32 s10, s10, s11\ns_lshl_b32 s10, s10, 7\ns_and_b32 s11, s{sLO}, 3\ns_lshl_b32 s11, s11, 2\ns_add_u32 s11, s11, s{sW}\ns_lshl_b32 s11, s11, 2\ns_add_u32 s10, s10, s11\ns_add_u32 s10, s10, {FD}')
    ACC = [112, 128, 144, 192]; WBUF = 160
    seq = [(ks, i) for ks in range(28) for i in range(3)] + [(ks, i) for i in range(3, 7) for ks in range(28)]
    acc = lambda i: ACC[i % 4]
    tslot = [0, 1, 2, 3, 4, 0, 1]
    def rd(n):
        ks, i = seq[n]; base = SLOT[tslot[i]]
        reg, off = (246, base) if base < 65536 else ((240, base - 65536) if base < 122880 else (241, base - 122880))
        return f'ds_read_b128 {v(WBUF+4*(n%8),4)}, v{reg} offset:{off+1024*ks}'
    def epi(i):
        b = acc(i)
        l = [f'v_mul_f32 v{b+q}, v{b+q}, v{b+8+q}' for q in range(8)] + [f'v_mul_f32 v{b+q}, v248, v{b+q}' for q in range(8)]
        l += [f'v_cvt_pk_bf16_f32 v{b+8+q}, v{b+2*q}, v{b+2*q+1}' for q in range(4)]
        l += [f'buffer_store_dwordx4 {v(b+8,4)}, v246, {srd(WS)}, s{8 if i < 4 else 9} offen offset:{1024*(i&3)} sc1']
        return l
    ext = lambda i: f'{MFMA} {v(acc(i),16)}, {a(AX+4*i,4)}, v[212:215], 0'
    PD = 6; N = len(seq)
    for i in range(3): A(ext(i))
    issued = 0; fg = []; bgq = []; pend = []
    groups = {2: 0, 4: 1, 6: 2}
    wdrest = wd_items(nb, 56)
    for n in range(N):
        ks, i = seq[n]
        if n == 84:
            A.wait(A.tw34); A('s_barrier')
            bgq += w3_tile(5, 0) + w3_tile(6, 1)
            A.stamp('t012')
            fg = epi(0) + epi(1) + epi(2)
        if n == 84 + 56:
            A.wait(A.tw56); A('s_barrier')
        if n >= 84 and ks == 0 and i > 3: fg = fg + epi(i-1)
        if n >= 84 and ks == 0:
            assert not any(f'v{acc(i)+q},' in x or f'v[{acc(i)+8}:' in x for x in fg for q in range(16)), (i, fg)
            A(ext(i))
        lim = 84 + 56 if n < 84 + 56 else N
        if n < 84 and i == 0: A.wait(ty[ks])
        if issued <= n:
            while issued < n + PD: A(rd(issued)); issued += 1
        A(f's_waitcnt lgkmcnt({issued-1-n})')
        A(f'{MFMA} {v(acc(i),16)}, {v(WBUF+4*(n%8),4)}, {v(4*ks,4)}, {v(acc(i),16)}')
        while issued < min(n + PD + 1, lim): A(rd(issued)); issued += 1
        if n + 1 == lim and lim < N: pass
        for _ in range(2):
            if fg and not (n >= 84 and ks < 1):
                l = fg.pop(0); A(l)
                if l.startswith('buffer_store'):
                    ti = int(re.search(r'offset:(\d+)', l).group(1)) // 1024 + (4 if ', s9 ' in l else 0)
                    if ti in groups: pend.append((n + 24, groups[ti], A.tok()))
        if 8 <= n < 64 and n % 4 == 2:
            bg_emit(A); A.tw34 = A.tok()
        if not fg or n % 2:
            if bgq:
                A(bgq.pop(0))
                if not bgq: A.tw56 = A.tok()
            elif wdrest and n >= 30 and n % OPT.get('wdE', 4) == 0: A(wdrest.pop(0))
        if pend and n >= pend[0][0]:
            _, g, tk = pend.pop(0); A.wait(tk); A(f's_add_u32 s11, s10, {8192*g}'); A.flag('s11', TAG+4, 244)
        if n == 84 + 55:
            pass
    for l in wdrest: A(l)
    A.stamp('p3_gemm')
    for l in fg + epi(6): A(l)
    assert not pend
    A.thh = A.tok()

def p4(A):
    A(f's_cmp_ge_u32 s{sLO}, 14\ns_cbranch_scc1 L_p4_alt')
    A.cbeg()
    A(f's_and_b32 s8, s{sLO}, 1\ns_lshl_b32 s8, s8, 1\ns_lshl_b32 s1, s{sHI}, 2\ns_add_u32 s1, s1, s8')
    A(f'v_lshrrev_b32 v243, 1, v{VL}\nv_lshlrev_b32 v243, 4, v243\nv_and_b32 v245, 1, v{VL}\nv_add_u32 v245, s8, v245\nv_lshl_add_u32 v243, v245, 2, v243')
    A(f's_mul_i32 s0, s1, 112\ns_mul_i32 s9, s{sW}, 28\ns_add_u32 s0, s0, s9\ns_lshl_b32 s0, s0, 10\ns_add_u32 s0, s0, {HH}')
    A(f's_lshl_b32 s12, s{sHI}, 2\ns_add_u32 s12, s12, s{sW}\ns_lshl_b32 s12, s12, 7\ns_add_u32 s12, s12, {FD}')
    grp = [(0, 1, 2), (3, 4), (5, 6)]
    order = []
    for g in range(3): order.append([(7*mm + i, rho) for mm in range(4) for i in grp[g] for rho in range(2)])
    NB = 36; HB = 64
    A.c('group 0 flags were sent long ago; own last group is flagged once its store has drained')
    ld_n = 0; vm_local = 0
    flat = order[0] + order[1] + order[2]
    def ld(n):
        fk, rho = flat[n]
        A(f's_add_u32 s15, s0, {(rho*112+fk)*1024}\nbuffer_load_dwordx4 {v(HB+4*(n%NB),4)}, v246, {srd(WS)}, s15 offen sc1')
    def mf(n):
        fk, rho = flat[n]
        for nu in range(2):
            d = v(16*(2*rho+nu), 16)
            A(f'{MFMA} {d}, {a(8*fk+4*nu,4)}, {v(HB+4*(n%NB),4)}, {"0" if n < 2 else d}')
    A.poll(8, 243, 's12', TAG+4, 245)
    A(f's_add_u32 s11, s10, {8192*2}'); A.flag('s11', TAG+4, 244)
    A(f's_add_u32 s11, s12, 8192')
    A.poll(8, 243, 's11', TAG+4, 245)
    A.stamp('sd01')
    for n in range(36): ld(n)
    done = 0; loaded = 36
    while done < 24:
        A(f's_waitcnt vmcnt({loaded-1-done})'); mf(done); done += 1
        if loaded < 40 and loaded - NB < done - 1: ld(loaded); loaded += 1
    A(f's_add_u32 s11, s12, 16384')
    A.poll(8, 243, 's11', TAG+4, 245)
    A.stamp('sd2')
    while loaded < 56: ld(loaded); loaded += 1
    while done < 56:
        if done >= 40: A(f's_waitcnt vmcnt({loaded-1-done})')
        mf(done); done += 1
    A.stamp('p4_gemm')
    A(f's_lshl_b32 s8, s{sW}, 12\nv_add_u32 v244, s8, v246\ns_lshl_b32 s8, s{sW}, 14\nv_add_u32 v245, s8, v246\ns_barrier')
    for tau in range(4):
        for q in range(4): A(f'ds_write_b128 v244, {v(16*tau+4*q,4)} offset:{16384*tau+1024*q}')
    for i in range(8): A(f'v_lshlrev_b32 v{128+2*i}, 16, v{X1K+i}\nv_and_b32 v{129+2*i}, s{sMASK}, v{X1K+i}\nv_lshlrev_b32 v{144+2*i}, 16, v{GB+i}\nv_and_b32 v{145+2*i}, s{sMASK}, v{GB+i}')
    A(f'v_and_b32 v242, 31, v{VL}\nv_mul_u32_u24 v242, 896, v242\nv_lshrrev_b32 v243, 5, v{VL}\nv_lshl_add_u32 v242, v243, 4, v242')
    A(f's_mul_i32 s8, s2, 28672\ns_and_b32 s9, s{sLO}, 14\ns_and_b32 s10, s{sW}, 1\ns_add_u32 s9, s9, s10\ns_lshl_b32 s9, s9, 6\ns_add_u32 s8, s8, s9')
    A('s_waitcnt lgkmcnt(0)\ns_barrier')
    for sw in range(4):
        for q in range(4): A(f'ds_read_b128 {v(64+16*sw+4*q,4)}, v245 offset:{4096*sw+1024*q}')
    A('s_waitcnt lgkmcnt(8)')
    for i in range(8): A(f'v_pk_add_f32 {v(64+2*i,2)}, {v(64+2*i,2)}, {v(80+2*i,2)}')
    A('s_waitcnt lgkmcnt(0)')
    for i in range(8): A(f'v_pk_add_f32 {v(96+2*i,2)}, {v(96+2*i,2)}, {v(112+2*i,2)}')
    for i in range(8): A(f'v_pk_add_f32 {v(64+2*i,2)}, {v(64+2*i,2)}, {v(96+2*i,2)}')
    for i in range(8): A(f'v_pk_fma_f32 {v(64+2*i,2)}, {v(64+2*i,2)}, {v(144+2*i,2)}, {v(128+2*i,2)}')
    for i in range(8): A(f'v_cvt_pk_bf16_f32 v{80+i}, v{64+2*i}, v{65+2*i}')
    for pr in range(2):
        b = 80 + 4*pr
        A(f'v_permlane32_swap_b32 v{b}, v{b+2}\nv_permlane32_swap_b32 v{b+1}, v{b+3}')
    for pr in range(2): A(f'buffer_store_dwordx4 {v(80+4*pr,4)}, v242, {srd(OUT)}, s8 offen offset:{32*pr}')
    A('s_branch L_done')
    A.label('L_p4_alt')
    A(f's_waitcnt vmcnt(0)\ns_add_u32 s11, s10, {8192*2}'); A.flag('s11', TAG+4, 244)
    A.cend()
    A.label('L_done')
    A.stamp('end')

def epilogue(A):
    if A.stamps:
        A(f's_lshl_b32 s8, s{sHI}, 4\ns_add_u32 s8, s8, s{sLO}\ns_lshl_b32 s8, s8, 2\ns_add_u32 s8, s8, s{sW}\ns_lshl_b32 s8, s8, 7\ns_add_u32 s8, s8, {DBGA}')
        A('v_mov_b32 v1, 0')
        for i in range(A.nst): A(f'v_writelane_b32 v1, s{sST+i}, {i}')
        A(f'v_lshlrev_b32 v2, 2, v{VL}\ns_mov_b32 exec_hi, 0\nbuffer_store_dword v1, v2, {srd(WS)}, s8 offen\ns_waitcnt vmcnt(0)')
    A.label('L_exit')
    A('s_endpgm')

def build(stop=99, stamps=0):
    A = G(stamps); A.begin_kernel(KNAME)
    prologue(A); phase0_1(A); p1_kv(A); window_q(A)
    for _ in range(1):
        p2a(A)
        if stop == 2: break
        p2b(A)
        if stop == 3: break
        p3(A); p4(A)
    epilogue(A)
    A.end_kernel(KNAME, (256,1,1), (256,1,1), 163840, 512, 256)
    rep = []
    A.L = hazard.fix(A.L, rep)
    return A.text(single=True), A.stnames, rep[0]

if __name__ == '__main__':
    stop = int(sys.argv[2]) if len(sys.argv) > 2 else 99
    stamps = int(sys.argv[3]) if len(sys.argv) > 3 else 0
    for kv in sys.argv[4:]:
        k_, v_ = kv.split('='); OPT[k_] = int(v_)
    t, names, nops = build(stop, stamps)
    open(sys.argv[1], 'w').write(t)
    open(sys.argv[1] + '.stamps', 'w').write(' '.join(names))
    print('auto nop states', nops, 'lines', t.count('\n'))
```

```python
import sys, re
from asmlib import *
import hazard, align

OPT = {}
EPOCH = 0x0; MODG = 0x1000; FA = 0x4000; FB = 0x6000; FC = 0x8000; FD = 0xA000; FW3 = 0x1D000; FWD = 0x1E000
AEXT = 0x20000; STAT = 0x40000; PART = 0x80000; KVP = 0x100000; OF = 0x200000; YF = 0x400000; W3P = 0x600000; WDP = 0x940000; HH = 0xB00000
DBGA = 0x1400000; DBGB = 0x1500000
sW, sH1, sR1, sHI, sLO = 3, 4, 5, 6, 7
sXCD, sJ = 4, 5
sE = 13
X, WQKV, WPHI, WO, WG, WU, WD, CC, WMOD, OUT, WS = [44 + 4*i for i in range(11)]
def srd(b): return f's[{b}:{b+3}]'
TAG = 88
sSPIN = 95
sL2E = 96; sUP = 98; sMASK = 100; sONES = 101
sST = 16
VL = 255
SPIN_MAX = 2000000
XREG = 28672; HIA = 114688; WQL = 122880; TBL = 151552; KVS = TBL + 4096; AXT = KVS + 4096
SLOT = [65536, 94208, 122880, 0, 28672]
PHI = 98304; VFR = PHI + 16384
PSC = 0; WKV2 = 12288
MFMA = 'v_mfma_f32_32x32x16_bf16'

class G(Asm):
    def __init__(self, stamps=0):
        super().__init__(); self.stamps = stamps; self.nst = 0; self.stnames = []
        self.vm = 0; self.cond = 0
    def __call__(self, t):
        for l in t.split('\n'):
            l = l.strip()
            if not l: continue
            if l.startswith(('buffer_', 'global_')) and not self.cond: self.vm += 1
            self.L.append('    ' + l)
    def tok(self): return self.vm
    def wait(self, tok):
        n = self.vm - tok
        assert n >= 0
        self(f's_waitcnt vmcnt({min(n, 63)})') if n <= 63 else self('s_waitcnt vmcnt(63)')
        assert n <= 63, n
    def cbeg(self): self.cond += 1
    def cend(self): self.cond -= 1
    def stamp(self, name):
        if not self.stamps: return
        if OPT.get('fine2') and name in ('gv_loaded', 'gv_pub', 'x0', 'x_landed', 't_done', 't012', 'sd01', 'sd2'): return
        if OPT.get('fine3') and name in ('gv_loaded', 'gv_pub', 'x0', 'x_landed', 't_done', 'phik', 'phiq'): return
        i = self.nst; self.nst += 1; self.stnames.append(name)
        assert i < 24
        self(f'{"s_memtime" if OPT.get("cyc") else "s_memrealtime"} s[40:41]\ns_waitcnt lgkmcnt(0)\ns_mov_b32 s{sST+i}, s40')
    def spin_check(self, out):
        self(f's_add_u32 s{sSPIN}, s{sSPIN}, 1\ns_cmp_gt_u32 s{sSPIN}, {SPIN_MAX}\ns_cbranch_scc1 {out}')
    def setexec(self, n):
        if n >= 64: self('s_mov_b64 exec, -1')
        elif n <= 31: self(f's_mov_b64 exec, {hex((1 << n) - 1)}')
        else: self(f's_mov_b32 exec_lo, -1\ns_mov_b32 exec_hi, {hex((1 << (n-32)) - 1)}')
    def poll(self, nl, voff, soff, tag, tmp, sleep=1, bg=0):
        l = self.newlabel('P'); o = self.newlabel('PX')
        self.setexec(nl)
        self.label(l)
        self(f'buffer_load_dword v{tmp}, v{voff}, {srd(WS)}, {soff} offen sc1\ns_waitcnt vmcnt(0)\nv_cmp_ne_u32 vcc, s{tag}, v{tmp}')
        self.spin_check(o)
        self(f's_cbranch_vccz {o}')
        if bg:
            self('s_mov_b64 exec, -1'); bg_emit(self, bg); self.setexec(nl)
        if sleep: self(f's_sleep {sleep}')
        self(f's_branch {l}')
        self.label(o)
        self('s_mov_b64 exec, -1')
    def poll2(self, nl, voff, soff, tag, pair, acc, first=True, bg=0):
        l = self.newlabel('P'); o = self.newlabel('PX')
        if first: self(f'v_mov_b32 v{acc}, 0')
        self.setexec(nl)
        self.label(l)
        self(f'buffer_load_dwordx2 {v(pair,2)}, v{voff}, {srd(WS)}, {soff} offen sc1\ns_waitcnt vmcnt(0)\nv_cmp_ne_u32 vcc, s{tag}, v{pair}')
        self.spin_check(o)
        self(f's_cbranch_vccz {o}')
        if bg:
            self('s_mov_b64 exec, -1'); bg_emit(self, bg); self.setexec(nl)
        self(f's_sleep 1\ns_branch {l}')
        self.label(o)
        self(f'v_sub_u32 v{acc}, v{acc}, v{pair+1}\ns_mov_b64 exec, -1')
    def verify(self, acc, retry, sreg=8):
        o = self.newlabel('V')
        self(f'v_readlane_b32 s{sreg}, v{acc}, 63\ns_cmp_eq_u32 s{sreg}, 0\ns_cbranch_scc1 {o}')
        self.spin_check(o)
        self(f's_branch {retry}')
        self.label(o)
    def flag(self, soff, tag, tmp, zero=254):
        self(f'v_mov_b32 v{tmp}, s{tag}\ns_mov_b64 exec, 1\nbuffer_store_dword v{tmp}, v{zero}, {srd(WS)}, {soff} offen sc1\ns_mov_b64 exec, -1')
    def mix(self, main, bg, every, start=0):
        bg = list(bg); k = 0
        for i, l in enumerate(main):
            self(l)
            if bg and i >= start and (i - start) % every == every - 1:
                b = bg.pop(0)
                if b == 'BG': bg_emit(self)
                else: self(b)
        for b in bg:
            if b != 'BG': self(b)

def wsum(regs):
    out = []
    for m in ('row_shr:1 row_mask:0xf bank_mask:0xf bound_ctrl:0', 'row_shr:2 row_mask:0xf bank_mask:0xf bound_ctrl:0', 'row_shr:4 row_mask:0xf bank_mask:0xf bound_ctrl:0',
              'row_shr:8 row_mask:0xf bank_mask:0xf bound_ctrl:0', 'row_bcast:15 row_mask:0xa bank_mask:0xf', 'row_bcast:31 row_mask:0xc bank_mask:0xf'):
        for r in regs: out.append(f'v_add_u32_dpp v{r}, v{r}, v{r} {m}')
    return out
def addn(dst, regs, init=True):
    regs = list(regs); out = []
    if init:
        out.append(f'v_add3_u32 v{dst}, v{regs[0]}, v{regs[1]}, v{regs[2]}'); regs = regs[3:]
    while len(regs) >= 2:
        out.append(f'v_add3_u32 v{dst}, v{dst}, v{regs[0]}, v{regs[1]}'); regs = regs[2:]
    if regs: out.append(f'v_add_u32 v{dst}, v{dst}, v{regs[0]}')
    return out
def flag2(pair, soff, off=0):
    return f's_mov_b32 exec_lo, 0\ns_brev_b32 exec_hi, 1\nbuffer_store_dwordx2 {v(pair,2)}, v254, {srd(WS)}, {soff} offen offset:{off} sc1\ns_mov_b64 exec, -1'

class Rec:
    def __init__(self): self.l = []
    def __call__(self, t): self.l += [x.strip() for x in t.split('\n') if x.strip()]

def xhalf(A, a, b, op):
    A(f'v_permlane32_swap_b32 v{a}, v{b}\n{op} v{a}, v{a}, v{b}\nv_mov_b32 v{b}, v{a}\nv_permlane32_swap_b32 v{a}, v{b}')

def softmax2(A, P, EP, EM, O, T):
    mx, nm = T, T + 2
    A(f'v_max3_f32 v{mx}, v{P}, v{P+1}, v{P+2}\nv_max3_f32 v{nm}, -v{P}, -v{P+1}, -v{P+2}')
    for i in range(3, 15, 2):
        A(f'v_max3_f32 v{mx}, v{mx}, v{P+i}, v{P+i+1}\nv_max3_f32 v{nm}, v{nm}, -v{P+i}, -v{P+i+1}')
    A(f'v_max_f32 v{mx}, v{mx}, v{P+15}\nv_max_f32_e64 v{nm}, v{nm}, -v{P+15}')
    xhalf(A, mx, nm, 'v_max_f32')
    A(f'v_mul_f32_e64 v{mx}, -v{mx}, s{sL2E}\nv_mul_f32_e64 v{nm}, -v{nm}, s{sL2E}')
    for i in range(0, 16, 2):
        A(f'v_pk_fma_f32 {v(EP+i,2)}, {v(P+i,2)}, {s(sL2E,2)}, {v(mx,2)} op_sel_hi:[1,1,0]')
        A(f'v_pk_fma_f32 {v(EM+i,2)}, {v(P+i,2)}, {s(sL2E,2)}, {v(nm,2)} op_sel_hi:[1,1,0] neg_lo:[1,0,0] neg_hi:[1,0,0]')
    for i in range(16):
        A(f'v_exp_f32 v{EP+i}, v{EP+i}\nv_exp_f32 v{EM+i}, v{EM+i}')
    A(f's_mov_b64 exec, {s(sUP,2)}\n' + '\n'.join(f'v_mov_b32 v{EP+i}, 0\nv_mov_b32 v{EM+i}, 0' for i in range(12, 16)) + '\ns_mov_b64 exec, -1') if isinstance(A, G) else \
        A.l.append(f's_mov_b64 exec, {s(sUP,2)}\n' + '\n'.join(f'v_mov_b32 v{EP+i}, 0\nv_mov_b32 v{EM+i}, 0' for i in range(12, 16)) + '\ns_mov_b64 exec, -1')
    A(f'v_pk_add_f32 {v(mx,2)}, {v(EP,2)}, {v(EP+2,2)}\nv_pk_add_f32 {v(nm,2)}, {v(EM,2)}, {v(EM+2,2)}')
    for i in range(4, 16, 2):
        A(f'v_pk_add_f32 {v(mx,2)}, {v(mx,2)}, {v(EP+i,2)}\nv_pk_add_f32 {v(nm,2)}, {v(nm,2)}, {v(EM+i,2)}')
    A(f'v_add_f32 v{mx}, v{mx}, v{mx+1}\nv_add_f32 v{nm}, v{nm}, v{nm+1}')
    xhalf(A, mx, nm, 'v_add_f32')
    A(f'v_rcp_f32 v{mx}, v{mx}\nv_rcp_f32 v{nm}, v{nm}')
    for i in range(0, 16, 2):
        A(f'v_pk_mul_f32 {v(EP+i,2)}, {v(EP+i,2)}, {v(mx,2)} op_sel_hi:[1,0]')
        A(f'v_pk_mul_f32 {v(EM+i,2)}, {v(EM+i,2)}, {v(nm,2)} op_sel_hi:[1,0]')
    for i in range(8):
        A(f'v_cvt_pk_bf16_f32 v{O+i}, v{EP+2*i}, v{EP+2*i+1}\nv_cvt_pk_bf16_f32 v{O+8+i}, v{EM+2*i}, v{EM+2*i+1}')

def lnstats(A, sm, sq, t):
    A(f'v_mul_f32 v{sm}, 0x3b124925, v{sm}\nv_mul_f32 v{sq}, 0x3b124925, v{sq}')
    A(f'v_fma_f32 v{sq}, -v{sm}, v{sm}, v{sq}\nv_max_f32 v{sq}, 0, v{sq}')
    A(f'v_cvt_pk_bf16_f32 v{t}, v{sm}, v{sq}\nv_lshlrev_b32 v{sm}, 16, v{t}\nv_and_b32 v{sq}, s{sMASK}, v{t}')
    A(f'v_add_f32 v{sq}, 0x3727c5ac, v{sq}\nv_cvt_pk_bf16_f32 v{t}, v{sq}, v{sq}\nv_and_b32 v{sq}, s{sMASK}, v{t}')
    A(f'v_sqrt_f32 v{sq}, v{sq}\nv_cvt_pk_bf16_f32 v{t}, v{sq}, v{sq}\nv_and_b32 v{t}, s{sMASK}, v{t}\nv_rcp_f32 v{sq}, v{t}')

def lanebits(A, hl=None, nb=None, r=None, c=None):
    if hl is not None: A(f'v_lshrrev_b32 v{hl}, 5, v{VL}')
    if nb is not None: A(f'v_bfe_u32 v{nb}, v{VL}, 4, 1')
    if r is not None: A(f'v_bfe_u32 v{r}, v{VL}, 2, 2')
    if c is not None: A(f'v_and_b32 v{c}, 3, v{VL}')

def lane_restore(A):
    A(f'v_mbcnt_lo_u32_b32 v{VL}, -1, 0\nv_mbcnt_hi_u32_b32 v{VL}, -1, v{VL}\nv_mov_b32 v254, 0')

def dma(m0expr, voff, rs, soff, fl=''):
    b, i = m0expr
    l = f's_add_u32 m0, s{b}, {i}' if b is not None else f's_mov_b32 m0, {i}'
    sb, si = soff
    return f'{l}\ns_add_u32 s15, s{sb}, {si}\nbuffer_load_dwordx4 v{voff}, {srd(rs)}, s15 offen {fl} lds'

def tags(A):
    A(f'v_readfirstlane_b32 s{sE}, v253\ns_lshl_b32 s8, s{sE}, 4')
    for p in range(7): A(f's_add_u32 s9, s8, {p+1}\ns_mul_i32 s{TAG+p}, s9, 0x9E3779B1')

def prologue(A):
    A('s_cmp_ge_u32 s2, 256\ns_cbranch_scc1 L_exit')
    A('s_load_dwordx16 s[16:31], s[0:1], 0\ns_load_dwordx8 s[32:39], s[0:1], 64\ns_load_dwordx2 s[40:41], s[0:1], 96')
    A(f'v_and_b32 v{VL}, 63, v0\nv_lshrrev_b32 v1, 6, v0\nv_readfirstlane_b32 s{sW}, v1')
    A(f's_and_b32 s{sXCD}, s2, 7\ns_lshr_b32 s{sJ}, s2, 3\ns_lshr_b32 s8, s{sJ}, 4\ns_lshl_b32 s{sHI}, s{sXCD}, 1\ns_add_u32 s{sHI}, s{sHI}, s8\ns_and_b32 s{sLO}, s{sJ}, 15')
    A(f's_mov_b32 s{sSPIN}, 0\ns_mov_b32 s{sL2E}, 0x3fb8aa3b\ns_mov_b32 s{sL2E+1}, 0x3fb8aa3b\ns_mov_b32 s{sUP}, 0\ns_mov_b32 s{sUP+1}, -1')
    A(f's_mov_b32 s{sMASK}, 0xffff0000\ns_mov_b32 s{sONES}, 0x3f803f80')
    sizes = {X: 1835008, WQKV: 1204224, WPHI: 25088, WO: 401408, WG: 1605632, WU: 1605632, WD: 1605632, CC: 896, WMOD: 2408448, OUT: 1835008, WS: 0x2000000}
    for b, n in sizes.items(): A(f's_mov_b32 s{b+2}, {n}\ns_mov_b32 s{b+3}, 0x00020000')
    A(f's_lshl_b32 s8, s2, 2\ns_add_u32 s8, s8, s{sW}\ns_mul_i32 s12, s8, 1561\ns_lshr_b32 s12, s12, 16\ns_mul_i32 s9, s12, 42\ns_sub_u32 s11, s8, s9')
    lg = OPT.get('lg', 2)
    A(f's_lshr_b32 s8, s{sXCD}, {lg}\ns_lshl_b32 s8, s8, {1+lg}\ns_lshr_b32 s9, s{sJ}, {4-lg}\ns_add_u32 s8, s8, s9')
    A(f's_and_b32 s9, s{sXCD}, {(1<<lg)-1}\ns_lshl_b32 s9, s9, {4-lg}\ns_and_b32 s10, s{sJ}, {(1<<(4-lg))-1}\ns_add_u32 s{sH1}, s9, s10\ns_mov_b32 s{sR1}, s8\ns_mul_i32 s14, s{sW}, {XREG}')
    A(f'v_mov_b32 v254, 0\nv_lshlrev_b32 v1, 7, v{VL}')
    A('s_waitcnt lgkmcnt(0)')
    src = {X: 16, WQKV: 18, WPHI: 20, WO: 22, WG: 26, WU: 28, WD: 30, CC: 32, WMOD: 34, OUT: 36, WS: 40}
    for b in (X, WQKV, WS, WMOD, CC, WPHI, WO, WG, WU, WD, OUT): A(f's_mov_b64 {s(b,2)}, {s(src[b],2)}')
    A('s_mov_b64 s[42:43], s[38:39]\ns_mov_b32 s0, s14')
    A(f'buffer_load_dword v253, v254, {srd(WS)}, 0 offen sc1')

def gemv1_loads(A):
    A(f'v_lshrrev_b32 v4, 3, v{VL}\nv_and_b32 v5, 7, v{VL}\nv_mul_u32_u24 v6, 5376, v4\nv_lshl_add_u32 v6, v5, 4, v6\nv_lshlrev_b32 v4, 1, v4')
    A(f's_mul_i32 s8, s12, {24*5376}\ns_lshl_b32 s9, s11, 7\ns_add_u32 s8, s8, s9\ns_mul_i32 s9, s12, 48')
    for i in range(3): A(f'buffer_load_ushort v{20+i}, v4, {srd(CC)}, s9 offen offset:{16*i}')
    for i in range(3): A(f'buffer_load_dwordx4 {v(8+4*i,4)}, v6, {srd(WMOD)}, s8 offen' + ('\ns_add_u32 s8, s8, 43008' if i < 2 else ''))

def gemv1_compute(A):
    C, e, acc = 20, 24, 28
    for i in range(8): A(f'v_mov_b32 v{acc+i}, 0')
    for i in range(3): A(f'v_lshlrev_b32 v{C+i}, 16, v{C+i}\nv_mul_f32_e64 v{e+i}, -v{C+i}, s{sL2E}\nv_exp_f32 v{e+i}, v{e+i}')
    for i in range(3): A(f'v_add_f32 v{e+i}, 1.0, v{e+i}\nv_rcp_f32 v{e+i}, v{e+i}')
    A(f's_mul_i32 s8, s12, {2688*8}\ns_lshl_b32 s9, s14, 9\ns_add_u32 s8, s8, s9\ns_add_u32 s8, s8, {PART}')
    for i in range(3): A(f'v_mul_f32 v{C+i}, v{C+i}, v{e+i}\nv_cvt_pk_bf16_f32 v{C+i}, v{C+i}, v{C+i}\nv_and_b32 v{e+i}, s{sMASK}, v{C+i}\nv_lshrrev_b32 v{C+i}, 16, v{C+i}')
    for i in range(3):
        for d in range(4): A(f'v_dot2c_f32_bf16 v{acc+2*d}, v{8+4*i+d}, v{C+i}\nv_dot2c_f32_bf16 v{acc+1+2*d}, v{8+4*i+d}, v{e+i}')
    A(f'v_and_b32 v4, 7, v{VL}\nv_lshlrev_b32 v4, 6, v4\nv_lshrrev_b32 v5, 4, v{VL}\nv_lshl_add_u32 v4, v5, 4, v4')
    for i in range(4): A(f'v_permlane32_swap_b32 v{acc+i}, v{acc+4+i}')
    for i in range(4): A(f'v_add_f32 v{acc+i}, v{acc+i}, v{acc+4+i}')
    for i in range(2): A(f'v_permlane16_swap_b32 v{acc+i}, v{acc+2+i}')
    A(f'v_add_f32 v{acc}, v{acc}, v{acc+2}\nv_add_f32 v{acc+2}, v{acc+1}, v{acc+3}\nv_mov_b32 v{acc+1}, s{TAG}\nv_mov_b32 v{acc+3}, s{TAG}')
    for i in (0, 2): A(f'v_add_f32_dpp v{acc+i}, v{acc+i}, v{acc+i} row_ror:8 row_mask:0xf bank_mask:0xf')
    A(f's_mov_b32 exec_lo, 0x00ff00ff\ns_mov_b32 exec_hi, 0x00ff00ff\nbuffer_store_dwordx4 {v(acc,4)}, v4, {srd(WS)}, s8 offen sc1\ns_mov_b64 exec, -1')

R2 = 224
def gemv2_loads(A):
    A(f's_lshl_b32 s8, s12, 7\ns_add_u32 s8, s8, {PART}')
    A(f'buffer_load_dwordx4 v[224:227], v236, {srd(WS)}, s8 offen sc1\ns_add_u32 s8, s8, {8*2688*8}\nbuffer_load_dwordx4 v[228:231], v236, {srd(WS)}, s8 offen sc1')
    A(f's_add_u32 s8, s8, {8*2688*8}\nbuffer_load_dwordx4 v[248:251], v237, {srd(WS)}, s8 offen sc1')

def gemv2_compute(A):
    A.label('L_g2')
    A(f'v_xor_b32 v225, s{TAG}, v225\nv_xor_b32 v227, s{TAG}, v227\nv_xor_b32 v229, s{TAG}, v229\nv_xor_b32 v231, s{TAG}, v231\nv_xor_b32 v249, s{TAG}, v249\nv_xor_b32 v251, s{TAG}, v251')
    A('v_or3_b32 v225, v225, v227, v229\nv_or3_b32 v231, v231, v249, v251\nv_or_b32 v225, v225, v231\nv_cmp_ne_u32 vcc, 0, v225')
    A.spin_check('L_g2x')
    A('s_cbranch_vccz L_g2x')
    gemv2_loads(A)
    A('s_waitcnt vmcnt(0)\ns_branch L_g2')
    A.label('L_g2x')
    A('v_add_f32 v224, v224, v228\nv_add_f32 v226, v226, v230\ns_mov_b64 exec, 0xffffff\nv_add_f32 v224, v224, v248\nv_add_f32 v226, v226, v250\ns_mov_b64 exec, -1')
    A('s_mov_b32 s8, 0\ns_sub_u32 s9, s12, 28\ns_cmp_lt_u32 s9, 28\ns_cselect_b32 s8, 1.0, s8\ns_sub_u32 s9, s12, 112\ns_cmp_lt_u32 s9, 28\ns_cselect_b32 s8, 1.0, s8')
    A('v_permlane32_swap_b32 v224, v226\nv_add_f32 v224, v224, v226\nv_mov_b32 v226, v224\nv_permlane16_swap_b32 v224, v226\nv_add_f32 v224, v224, v226')
    A('v_add_f32_dpp v224, v224, v224 row_ror:8 row_mask:0xf bank_mask:0xf\nv_mov_b32 v226, v224\nv_permlane32_swap_b32 v224, v226')
    A(f'v_cvt_pk_bf16_f32 v228, v224, v226\nv_lshlrev_b32 v224, 16, v228\nv_and_b32 v226, s{sMASK}, v228\nv_add_f32 v224, s8, v224\nv_add_f32 v226, s8, v226\nv_cvt_pk_bf16_f32 v228, v224, v226')
    A(f'v_mov_b32 v229, s{TAG}\nv_lshlrev_b32 v230, 3, v{VL}\ns_lshl_b32 s9, s12, 6\ns_add_u32 s9, s9, {MODG}\ns_mov_b64 exec, 0xff\nbuffer_store_dwordx2 v[228:229], v230, {srd(WS)}, s9 offen sc1\ns_mov_b64 exec, -1')

def unpack(A, r0, o0):
    for d in range(4):
        r = r0 + d; o = o0 + 2*d
        A(f'v_lshlrev_b32 v{o}, 16, v{r}\nv_and_b32 v{o+1}, s{sMASK}, v{r}')
def tscale(A, o0):
    for d in range(4):
        o = o0 + 2*d
        A(f'v_pk_fma_f32 {v(o,2)}, {v(o,2)}, v[220:221], v[220:221] op_sel:[0,1,0] op_sel_hi:[1,1,0]')

def wkv_m0(ks):
    return (None, HIA + 2048*ks) if ks < 4 else (0, WKV2 + 2048*((ks >> 2) - 1))
def wloc(ks):
    if ks < 4: return 255, 2048*ks
    w = ks & 3; off = WKV2 + 2048*((ks >> 2) - 1)
    return (223, w*XREG + off) if w < 2 else (254, (w-2)*XREG + off)

def phase0_1(A):
    A.stamp('start')
    gemv1_loads(A)
    tg1 = A.tok()
    if OPT.get('ctouch'):
        A(f's_cmp_lg_u32 s{sW}, 2\ns_cbranch_scc1 L_ct\ns_getpc_b64 s[8:9]')
        A.label('L_pc')
        A.cbeg()
        A(f's_mov_b32 s10, L_exit-L_pc\ns_and_b32 s15, s{sLO}, 7\ns_lshl_b32 s15, s15, 13\nv_add_u32 v3, s15, v1\nv_min_u32 v3, s10, v3\nglobal_load_dword v2, v3, s[8:9]')
        A.cend(); A.label('L_ct')
    A('s_mov_b32 s14, s11')
    lg = OPT.get('lg', 2); nsh = 16 >> lg
    A.cbeg()
    per = 16 // nsh
    if per >= 4:
        A(f's_and_b32 s8, s{sH1}, {nsh-1}\ns_lshl_b32 s8, s8, 2\ns_add_u32 s8, s8, s{sW}\ns_mul_i32 s8, s8, {per//4}\ns_lshl_b32 s9, s{sR1}, 4\ns_add_u32 s8, s8, s9\ns_mul_i32 s8, s8, 7168'); A.setexec(56)
        for i in range(per // 4): A(f'buffer_load_dword v2, v1, {srd(X)}, s8 offen' + ('\ns_add_u32 s8, s8, 7168' if i + 1 < per // 4 else ''))
        A('s_mov_b64 exec, -1')
    else:
        A(f's_sub_u32 s9, s{sW}, 1\ns_cmp_ge_u32 s9, {per}\ns_cbranch_scc1 L_t0')
        A(f's_and_b32 s8, s{sH1}, {nsh-1}\ns_mul_i32 s8, s8, {per}\ns_add_u32 s8, s8, s9\ns_lshl_b32 s9, s{sR1}, 4\ns_add_u32 s8, s8, s9\ns_mul_i32 s8, s8, 7168'); A.setexec(56)
        A(f'buffer_load_dword v2, v1, {srd(X)}, s8 offen\ns_mov_b64 exec, -1')
    A.label('L_t0')
    A.cend()
    A(f'v_lshrrev_b32 v3, 3, v{VL}\nv_lshrrev_b32 v4, 4, v{VL}\nv_and_b32 v5, 7, v{VL}\nv_xor_b32 v5, v5, v4\nv_lshlrev_b32 v5, 4, v5\nv_mul_u32_u24 v3, 896, v3\nv_add_u32 v250, v3, v5\nv_xor_b32 v251, 64, v250')
    A(f's_lshl_b32 s8, s{sR1}, 2\ns_add_u32 s8, s8, s{sW}\ns_mul_i32 s11, s8, {32*896}')
    xp = lambda G_: [dma((0, 4096*G_+1024*p), 250+(p&1), X, (11, 7168*p+128*G_)) for p in range(4)]
    xt = []
    for G_ in range(2):
        for l in xp(G_): A(l)
        xt.append(A.tok())
    if OPT.get('wtouch', 0):
        A(f's_and_b32 s8, s{sHI}, 1\ns_lshl_b32 s8, s8, 4\ns_add_u32 s8, s8, s{sLO}\ns_lshl_b32 s8, s8, 2\ns_add_u32 s8, s8, s{sW}\ns_mul_i32 s8, s8, 49')
        A(f'v_min_u32 v3, 48, v{VL}\nv_add_u32 v3, s8, v3\nv_mul_u32_u24 v4, 18725, v3\nv_lshrrev_b32 v4, 18, v4\nv_mul_u32_u24 v5, 7, v4\nv_add3_u32 v3, v3, v5, 7\nv_lshlrev_b32 v3, 7, v3')
        A(f'buffer_load_dword a200, v3, {srd(WQKV)}, 0 offen')
    A(f'v_and_b32 v222, 31, v{VL}\nv_subrev_u32 v223, 4, v222\nv_cmp_gt_u32 vcc, 28, v222\nv_cndmask_b32 v222, v223, v222, vcc\nv_lshlrev_b32 v222, 1, v222\nv_lshrrev_b32 v223, 5, v{VL}')
    A(f'v_mul_u32_u24 v7, 224, v223\nv_add_u32 v222, v222, v7\nv_lshl_add_u32 v223, v223, 20, v222\ns_mul_i32 s8, s{sH1}, 1568')
    for u in range(2):
        for j in range(8):
            off = (16*u + 8*(j >> 2) + (j & 3)) * 56
            A(f'buffer_load_ushort v{224+8*u+j}, v{223 if (u==1 and j>=4) else 222}, {srd(WPHI)}, s8 offen offset:{off}')
    tphi = A.tok()
    A(f'v_lshrrev_b32 v3, 2, v{VL}\nv_mul_u32_u24 v3, 2688, v3\nv_and_b32 v4, 3, v{VL}\nv_lshl_add_u32 v252, v4, 4, v3')
    A(f's_mul_i32 s10, s{sW}, 43008\ns_mul_i32 s9, s{sH1}, 56\ns_add_u32 s1, s10, s9')
    A(f'v_and_b32 v5, 31, v{VL}\nv_lshrrev_b32 v6, 5, v{VL}\nv_bfe_u32 v7, v{VL}, 1, 3\nv_xor_b32 v6, v6, v7\nv_lshlrev_b32 v5, 7, v5\nv_add_u32 v5, s0, v5')
    for q in range(4): A(f'v_xor_b32 v7, {2*q}, v6\nv_lshl_add_u32 v{240+q}, v7, 4, v5')
    for i in range(4): A(f'v_mov_b32 v{244+i}, 0')
    A.wait(tg1)
    A.stamp('gv_loaded')
    tags(A)
    A('s_cmp_ge_u32 s12, 19\ns_cbranch_scc1 L_gv2')
    A.cbeg(); gemv1_compute(A); A.cend()
    A.label('L_gv2')
    A.stamp('gv_pub')
    A(f's_cmp_eq_u32 s{sW}, 3\ns_cselect_b32 s12, s2, 999')
    def raw(ks): return 8*ks + 4 if ks < 27 else 216
    def proc(A, G_):
        for ks in range(4*G_, 4*G_+4):
            for d in range(4):
                r = raw(ks) + d
                A(f'v_dot2c_f32_bf16 v{244+(d&1)}, s{sONES}, v{r}\nv_dot2c_f32_bf16 v{246+(d&1)}, v{r}, v{r}')
        for ks in range(4*G_, 4*G_+4):
            if ks < 27: unpack(A, raw(ks), 8*ks)
    def wkv_p(i, pat):
        out = []
        for seg in (1, 2):
            m0 = (9, HIA + 1024*(seg-1)) if i == 0 else (0, WKV2 + 2048*(i-1) + 1024*(seg-1))
            out.append(dma(m0, pat, WQKV, (1, 172032*i + 896*seg)))
        return out
    def modld():
        A(f'buffer_load_dwordx2 v[224:225], v232, {srd(WS)}, s2 offen sc1\nbuffer_load_dwordx2 v[226:227], v232, {srd(WS)}, s2 offen offset:1792 sc1')
        A.tmod = A.tok()
        if not OPT.get('w23late'):
            for l in wkv_p(2, 252) + wkv_p(3, 252): A(l)
            A.tkv1 = A.tok()
    for G_ in range(7):
        if G_ + 2 < 7:
            for l in xp(G_+2): A(l)
            xt.append(A.tok())
        A.wait(xt[G_])
        if G_ == 0: A.stamp('x0')
        if G_ == 6: A.stamp('x_landed')
        for ks in range(4*G_, 4*G_+4): A(f'ds_read_b128 {v(raw(ks),4)}, v{240+(ks&3)} offset:{4096*G_}')
        if G_ == OPT.get('g2at', 4):
            A('s_cmp_ge_u32 s12, 168\ns_cbranch_scc1 L_g2a'); A.cbeg(); gemv2_loads(A); A.cend(); A.label('L_g2a')
        if G_ == 6:
            A('s_cmp_ge_u32 s12, 168\ns_cbranch_scc1 L_g2b'); A.cbeg(); A(f's_waitcnt vmcnt({4 if OPT.get("w01at", 5) < 6 and OPT.get("g2at", 4) <= OPT.get("w01at", 5) else 0})'); gemv2_compute(A); A.cend(); A.label('L_g2b')
            if OPT.get('fine'): A.stamp('g2')
        if G_ == 2:
            for i in range(8): A(f'v_lshl_or_b32 v{224+2*i}, v{225+2*i}, 16, v{224+2*i}\nv_accvgpr_write_b32 a{96+i}, v{224+2*i}')
            A(f's_mul_i32 s8, s{sW}, 448\ns_add_u32 s2, s8, {MODG}\nv_min_u32 v232, 55, v{VL}\nv_lshlrev_b32 v232, 3, v232\ns_add_u32 s8, s8, {TBL}\nv_add_u32 v233, s8, v232')
            A(f'v_lshrrev_b32 v236, 3, v{VL}\nv_min_u32 v237, 2, v236\nv_mul_u32_u24 v236, {2688*8}, v236\nv_mul_u32_u24 v237, {2688*8}, v237\nv_and_b32 v238, 7, v{VL}\nv_lshl_add_u32 v236, v238, 4, v236\nv_lshl_add_u32 v237, v238, 4, v237')
        if G_ == OPT.get('w01at', 5):
            A(f's_lshl_b32 s9, s{sW}, 11')
            for l in wkv_p(0, 252) + wkv_p(1, 252): A(l)
        if G_ >= 1:
            A('s_waitcnt lgkmcnt(4)'); proc(A, G_-1)
    A('s_waitcnt lgkmcnt(0)')
    proc(A, 6)
    A('v_add_f32 v244, v244, v245\nv_add_f32 v246, v246, v247')
    xhalf(A, 244, 246, 'v_add_f32'); lnstats(A, 244, 246, 245)
    A('v_mul_f32_e64 v220, -v244, v246\nv_mov_b32 v221, v246')
    for ks in range(27):
        if ks == OPT.get('modat', 0): modld()
        tscale(A, 8*ks)
    for i in range(4): A(f'v_accvgpr_write_b32 a{152+i}, v{216+i}')
    A.stamp('t_done')
    A('s_mov_b32 s8, s2')
    prep_setup(A)
    A(f'v_lshrrev_b32 v240, 5, v{VL}\nv_lshlrev_b32 v222, 5, v240\nv_add_u32 v222, {TBL}, v222')
    A(f'v_bfe_u32 v241, v{VL}, 3, 1\nv_lshl_add_u32 v246, v241, 6, v222\nv_and_b32 v241, 7, v{VL}\nv_lshl_add_u32 v246, v241, 2, v246')
    A(f'v_lshlrev_b32 v240, 3, v240\nv_bfe_u32 v241, v{VL}, 2, 2\nv_add_u32 v240, v240, v241\nv_lshlrev_b32 v240, 6, v240\nv_bfe_u32 v241, v{VL}, 4, 1\nv_lshl_add_u32 v240, v241, 5, v240')
    A(f'v_and_b32 v241, 3, v{VL}\nv_lshl_add_u32 v223, v241, 3, v240\nv_mov_b32 v216, v252\nv_mov_b32 v218, v{VL}')
    A.wait(A.tmod)
    if OPT.get('fine'): A.stamp('tmod')
    A.label('L_s0')
    A(f'v_xor_b32 v225, s{TAG}, v225\nv_xor_b32 v227, s{TAG}, v227\nv_or_b32 v225, v225, v227\nv_cmp_ne_u32 vcc, 0, v225')
    A.spin_check('L_s0x')
    A('s_cbranch_vccz L_s0x')
    A.cbeg()
    A(f'buffer_load_dwordx2 v[224:225], v232, {srd(WS)}, s8 offen sc1\nbuffer_load_dwordx2 v[226:227], v232, {srd(WS)}, s8 offen offset:1792 sc1\ns_waitcnt vmcnt(0)\ns_branch L_s0')
    A.cend()
    A.label('L_s0x')
    A(f'v_and_b32 v225, s{sMASK}, v224\nv_lshlrev_b32 v224, 16, v224\nv_and_b32 v227, s{sMASK}, v226\nv_lshlrev_b32 v226, 16, v226')
    if OPT.get('fine'): A.stamp('modok')
    A('ds_write_b64 v233, v[224:225]\nds_write_b64 v233, v[226:227] offset:1792')
    if OPT.get('w23late'):
        for l in wkv_p(2, 216) + wkv_p(3, 216): A(l)
        A.tkv1 = A.tok()
    for i in range(4, 7):
        for l in wkv_p(i, 216): A(l)
    A.tkv = A.tok()
    A(f'v_add_u32 v254, {2*XREG}, v223\nv_add_u32 v255, {HIA}, v223')
    A('s_waitcnt lgkmcnt(0)\ns_barrier')
    A.stamp('s0_done')

def prep_setup(A):
    A(f'v_mul_u32_u24 v217, 4682, v{VL}\nv_lshrrev_b32 v217, 16, v217\nv_mul_u32_u24 v240, 14, v217\nv_sub_u32 v240, v{VL}, v240\nv_lshrrev_b32 v241, 2, v217\nv_mul_u32_u24 v217, 3584, v217\nv_lshl_add_u32 v217, v240, 4, v217\nv_lshl_add_u32 v217, v241, 26, v217')
    A(f's_lshl_b32 s14, s{sR1}, 1\ns_add_u32 s14, s14, s{sW}\ns_sub_u32 s14, s14, 2\ns_mul_i32 s14, s14, {16*3584}\ns_mul_i32 s9, s{sH1}, 224\ns_add_u32 s11, s14, s9\ns_cmp_ge_u32 s{sR1}, 14\ns_cselect_b32 s11, 0x4000000, s11')
    A(f'v_lshrrev_b32 v219, 3, v{VL}\nv_bfe_u32 v240, v{VL}, 4, 1\nv_lshlrev_b32 v240, 2, v240\nv_and_b32 v241, 7, v{VL}\nv_xor_b32 v240, v240, v241\nv_mul_u32_u24 v219, 896, v219\nv_lshl_add_u32 v219, v240, 4, v219')
    A(f's_lshl_b32 s14, s{sHI}, 1\ns_and_b32 s9, s{sLO}, 1\ns_add_u32 s14, s14, s9\ns_lshl_b32 s14, s14, 1\ns_add_u32 s14, s14, s{sW}\ns_sub_u32 s14, s14, 2\ns_mul_i32 s14, s14, {32*896}\ns_lshr_b32 s9, s{sLO}, 1\ns_lshl_b32 s9, s9, 7\ns_add_u32 s2, s14, s9')
    A(f's_cmp_ge_u32 s{sLO}, 14\ns_cselect_b32 s2, 0x4000000, s2\ns_cmp_ge_u32 s{sHI}, 14\ns_cselect_b32 s2, 0x4000000, s2\ns_cmp_ge_u32 s{sW}, 2\ns_cselect_b32 s42, 1, 0')

def prep_pieces(A, j):
    lab = A.newlabel('PP')
    A(f's_cmp_eq_u32 s42, 0\ns_cbranch_scc1 {lab}')
    A.cbeg()
    if j < 4:
        A(dma((0, PSC + 1024*j), 217, WG, (11, 4*3584*j))); A(f's_add_u32 m0, s0, {PSC + 4096 + 1024*j}\ns_nop 0\nbuffer_load_dwordx4 v217, {srd(WU)}, s15 offen lds')
    else:
        for q in (2*(j-4), 2*(j-4)+1): A(dma((0, PSC + 8192 + 1024*q), 219, WD, (2, 7168*q)))
    A.cend(); A.label(lab)

def prep_store(A, t):
    A(f's_mov_b32 s11, 0x4000000')
    lanebits(A, hl=t, nb=t+1, r=t+2, c=t+3)
    A(f'v_mul_u32_u24 v217, 224, v{t+2}\nv_lshl_add_u32 v217, v{t}, 10, v217\nv_lshl_add_u32 v217, v{t+1}, 12, v217\nv_lshl_add_u32 v217, v{t+3}, 3, v217\nv_add_u32 v217, s0, v217')
    A(f'v_lshl_add_u32 v{t}, v{t}, 2, v{t+2}\nv_lshlrev_b32 v{t}, 7, v{t}\nv_lshl_add_u32 v{t}, v{t+1}, 5, v{t}\nv_lshl_add_u32 v{t}, v{t+3}, 3, v{t}\nv_add_u32 v{t}, s0, v{t}')
    A(f'v_lshrrev_b32 v{t+2}, 1, v{t+2}\nv_lshl_add_u32 v{t+1}, v{t+2}, 6, v{t}\nv_xor_b32 v{t+2}, 1, v{t+2}\nv_lshl_add_u32 v{t+2}, v{t+2}, 6, v{t}')
    A(f's_mul_i32 s8, s{sH1}, 196\ns_lshl_b32 s9, s{sR1}, 1\ns_add_u32 s9, s9, s{sW}\ns_sub_u32 s9, s9, 2\ns_add_u32 s8, s8, s9\ns_lshl_b32 s8, s8, 10\ns_add_u32 s8, s8, {W3P}')
    A(f's_lshl_b32 s9, s9, 2\ns_lshl_b32 s2, s{sH1}, 7\ns_add_u32 s2, s2, s9\ns_add_u32 s2, s2, {FW3}')
    A(f's_cmp_ge_u32 s{sR1}, 14\ns_cselect_b32 s2, 0x4000000, s2\ns_cselect_b32 s8, 0x4000000, s8\ns_waitcnt vmcnt(0)')
    for i in range(7):
        for sec in range(2): A(f'ds_read_b64_tr_b16 {a(104+4*i+2*sec,2)}, v217 offset:{PSC+2048*sec+32*i}')
    for k in range(2):
        for nu in range(2):
            for sec in range(2): A(f'ds_read_b64_tr_b16 {a(132+8*k+4*nu+2*sec,2)}, v{t+1+nu} offset:{PSC+8192+(16*k+8*sec)*128}')
    A('s_waitcnt lgkmcnt(8)')
    for i in range(7): A(f'buffer_store_dwordx4 {a(104+4*i,4)}, v246, {srd(WS)}, s8 offen sc1' + ('\ns_add_u32 s8, s8, 28672' if i < 6 else ''))
    A(f's_cmp_ge_u32 s{sLO}, 14\ns_cbranch_scc1 L_ps\ns_cmp_ge_u32 s{sHI}, 14\ns_cbranch_scc1 L_ps')
    A(f's_lshl_b32 s8, s{sHI}, 1\ns_and_b32 s9, s{sLO}, 1\ns_add_u32 s8, s8, s9\ns_lshl_b32 s8, s8, 1\ns_add_u32 s8, s8, s{sW}\ns_sub_u32 s8, s8, 2')
    A(f's_lshr_b32 s9, s{sLO}, 1\ns_lshl_b32 s11, s9, 6\ns_add_u32 s11, s11, s8\ns_lshl_b32 s11, s11, 2\ns_add_u32 s11, s11, {FWD}')
    A(f's_lshl_b32 s8, s8, 12\ns_mul_i32 s9, s9, {224*1024}\ns_add_u32 s8, s8, s9\ns_add_u32 s8, s8, {WDP}\ns_waitcnt lgkmcnt(0)')
    for i in range(4): A(f'buffer_store_dwordx4 {a(132+4*i,4)}, v246, {srd(WS)}, s8 offen offset:{1024*i} sc1')
    A.label('L_ps')
    A('s_waitcnt lgkmcnt(0)')

sBG = 14
def bg_run(A, lds0, n):
    A(f's_add_u32 s42, s{sM}, {lds0}\ns_mov_b32 s{sBG}, {n}')
def bg_item(A_, k=1):
    lab = A_.newlabel('BG'); one = f's_cmp_eq_u32 s{sBG}, 0\ns_cbranch_scc1 {lab}\ns_mov_b32 m0, s42\ns_sub_u32 s{sBG}, s{sBG}, 1\nbuffer_load_dwordx4 v246, {srd(WS)}, s43 offen sc1 lds\ns_add_u32 s42, s42, 4096\ns_add_u32 s43, s43, 4096\n'
    return ('BG', one * k, lab)
def bg_emit(A, k=1):
    if k == 0: return
    _, txt, lab = bg_item(A, k)
    A.cbeg(); A(txt); A.cend(); A.label(lab)
def bg_drain(A):
    l = A.newlabel('BD'); o = A.newlabel('BX')
    A.label(l); A.cbeg()
    A(f's_cmp_eq_u32 s{sBG}, 0\ns_cbranch_scc1 {o}\ns_mov_b32 m0, s42\ns_sub_u32 s{sBG}, s{sBG}, 1\nbuffer_load_dwordx4 v246, {srd(WS)}, s43 offen sc1 lds\ns_add_u32 s42, s42, 4096\ns_add_u32 s43, s43, 4096\ns_branch {l}')
    A.cend(); A.label(o)

def w3_tile(i, slot, sb=14):
    return [dma((sM, SLOT[slot] + 4096*p), 246, WS, (sW3, 28672*i + 4096*p), 'sc1') for p in range(7)]
sM = 12
sW3 = 1
sWD = 0

def wd_items(lo, hi):
    out = []
    for n in range(lo, hi):
        out.append(f's_add_u32 s15, s{sWD}, {1024*n}\nbuffer_load_dwordx4 {a(4*n,4)}, v246, {srd(WS)}, s15 offen sc1')
    return out

def p1_kv(A):
    WB = 48
    def sa_rd(ks):
        tb = 224 + 8*(ks & 1)
        return [f'ds_read_b128 {v(tb,4)}, v222 offset:{64*ks}', f'ds_read_b128 {v(tb+4,4)}, v222 offset:{64*ks+16}']
    def w_rd(ks):
        r, b = wloc(ks); wb = WB + 8*(ks % 3)
        return [f'ds_read_b64_tr_b16 {a(wb+4*n+2*sec,2)}, v{r} offset:{b+256*sec+1024*n}' for n in range(2) for sec in range(2)]
    def toff(ks): return 8*ks if ks < 27 else 112
    def mf(ks):
        wb = WB + 8*(ks % 3); h = v(4*ks, 4)
        c = lambda b: '0' if ks == 0 else a(b, 16)
        return [f'{MFMA} {a(0,16)}, {a(wb,4)}, {h}, {c(0)}', f'{MFMA} {a(16,16)}, {h}, {a(wb+4,4)}, {c(16)}']
    order = [i for i in range(14) if i != 6] + [6]
    for l in sa_rd(0): A(l)
    for i in order: A(f'ds_read_b32 v{240+i}, v246 offset:{1792+128*i}')
    for l in w_rd(0): A(l)
    for ks in range(29):
        tb = 224 + 8*(ks & 1); o = toff(ks) if ks < 28 else 0
        sr = sa_rd(ks+1) if ks + 1 < 28 else []
        wr = w_rd(ks+1) if ks + 1 < 28 else []
        m = mf(ks-1) if ks >= 1 else ['', '']
        if OPT.get('fine') and ks in (7, 8, 15, 22): A.stamp(f'k{ks}')
        if ks == 15:
            ex = 2 * max(0, min(6, 15 - OPT.get('prepat', 10)))
            A(f's_cmp_eq_u32 s42, 0\ns_cbranch_scc1 L_k15a\ns_waitcnt vmcnt({ex+7})\ns_branch L_k15b')
            A.label('L_k15a'); A.wait(A.tkv); A.label('L_k15b'); A('s_barrier')
            if OPT.get('fine'): A.stamp('k15b')
        if ks == 0: A(f's_lshl_b32 s10, s{sW}, 10')
        if ks == 10: A.twq = A.tok()
        P0 = OPT.get('prepat', 10)
        if P0 <= ks < P0 + 6: prep_pieces(A, ks - P0)
        if ks == max(16, P0 + 6) and OPT.get('wotouch', 1):
            A('s_cmp_eq_u32 s42, 0\ns_cbranch_scc1 L_wot')
            A.cbeg()
            A(f's_lshl_b32 s8, s{sHI}, 4\ns_add_u32 s8, s8, s{sLO}\ns_and_b32 s8, s8, 31\ns_lshl_b32 s8, s8, 1\ns_add_u32 s8, s8, s{sW}\ns_sub_u32 s8, s8, 2\ns_mul_i32 s8, s8, {49*128}')
            A(f'v_min_u32 v122, 48, v218\nv_lshlrev_b32 v122, 7, v122\nbuffer_load_dword a200, v122, {srd(WO)}, s8 offen')
            A.cend(); A.label('L_wot')
        if ks == 7:
            A.wait(A.tkv1); A('s_barrier')
        if ks == 26:
            for i in range(4): A(f'v_accvgpr_read_b32 v{116+i}, a{152+i}')
            unpack(A, 116, 112); tscale(A, 112)
        if ks == 28:
            A('s_waitcnt lgkmcnt(0)')
            for l in m: A(l)
            break
        fm = [f'v_fmac_f32_dpp v{tb+j}, v{240+(ks>>1)}, v{o+j} row_newbcast:{8*(ks&1)+j} row_mask:0xf bank_mask:0xf' for j in range(8)]
        cv = [f'v_cvt_pk_bf16_f32 v{4*ks+i}, v{tb+2*i}, v{tb+2*i+1}' for i in range(4)]
        A('s_waitcnt lgkmcnt(4)')
        extra = [dma((10, WQL + 4096*(ks-3)), 216, WQKV, (1, 172032*(ks-3)))] if 3 <= ks < 10 else []
        for l in [m[0]] + sr + wr[0:1] + fm[0:6] + [m[1]] + wr[1:4] + extra + fm[6:8] + cv: A(l)
    lane_restore(A)
    A.stamp('kv_gemm')
    for i in range(16): A(f'v_accvgpr_read_b32 v{112+i}, a{i}')
    for i in range(8): A(f'v_cvt_pk_bf16_f32 v{128+i}, v{112+2*i}, v{113+2*i}')
    A(f'{MFMA} {v(136,16)}, {a(96,4)}, {v(128,4)}, 0\n{MFMA} {v(136,16)}, {a(100,4)}, {v(132,4)}, {v(136,16)}')
    for i in range(16): A(f'v_accvgpr_read_b32 v{152+i}, a{16+i}')
    for i in range(8): A(f'v_cvt_pk_bf16_f32 v{168+i}, v{152+2*i}, v{153+2*i}')
    A('s_mov_b32 exec_lo, 0x10000000\ns_mov_b32 exec_hi, 0x10000000')
    for i in range(8): A(f'v_mov_b32 v{168+i}, s{sONES}')
    A(f's_mov_b64 exec, -1\ns_lshl_b32 s8, s{sW}, 11\ns_add_u32 s8, s8, {VFR}\nv_lshl_add_u32 v244, v{VL}, 4, s8')
    A('s_barrier')
    A(f'ds_write_b128 v244, {v(168,4)}\nds_write_b128 v244, {v(172,4)} offset:1024')
    A(f'v_and_b32 v244, 1, v{VL}\nv_bfe_u32 v245, v{VL}, 1, 1\nv_lshl_or_b32 v244, v245, 3, v244\nv_bfe_u32 v245, v{VL}, 3, 1\nv_lshl_or_b32 v244, v245, 2, v244')
    A(f'v_bfe_u32 v245, v{VL}, 2, 1\nv_lshl_or_b32 v244, v245, 1, v244\nv_lshrrev_b32 v245, 5, v{VL}\nv_xor_b32 v244, v244, v245')
    A(f'v_and_b32 v245, 31, v{VL}\nv_lshlrev_b32 v245, 7, v245\ns_lshl_b32 s8, s{sW}, 12\ns_add_u32 s8, s8, {PHI}\nv_add_u32 v245, s8, v245')
    softmax2(A, 136, 152, 176, 192, 208)
    for sg_ in range(2):
        for g in range(4):
            A(f'v_xor_b32 v246, {sg_*8+2*g}, v244\nv_lshl_add_u32 v246, v246, 3, v245\nds_write_b64 v246, {v(192+8*sg_+2*g,2)}')
    A(f's_cmp_eq_u32 s42, 0\ns_cbranch_scc1 L_wqa\ns_waitcnt vmcnt({12 + OPT.get("wotouch", 1)})\ns_branch L_wqb')
    A.label('L_wqa'); A.wait(A.twq); A.label('L_wqb')
    A(f'v_lshlrev_b32 v246, 4, v{VL}\ns_waitcnt lgkmcnt(0)\ns_barrier')
    A.stamp('phik')
    A(f's_cmp_ge_u32 s{sW}, 2\ns_cbranch_scc1 L_kv_skip')
    A.cbeg()
    A(f'v_lshrrev_b32 v244, 5, v{VL}\nv_bfe_u32 v245, v{VL}, 2, 2\nv_lshl_add_u32 v243, v244, 2, v245\nv_lshlrev_b32 v243, 7, v243\nv_add_u32 v243, {PHI}, v243')
    A(f'v_lshlrev_b32 v244, 1, v244\nv_bfe_u32 v245, v{VL}, 2, 1\nv_or_b32 v244, v244, v245\nv_bfe_u32 v245, v{VL}, 3, 1\nv_lshl_or_b32 v244, v245, 3, v244')
    A(f'v_bfe_u32 v245, v{VL}, 4, 1\nv_lshlrev_b32 v245, 2, v245\nv_and_b32 v247, 3, v{VL}\nv_or_b32 v245, v245, v247\ns_lshl_b32 s8, s{sW}, 3\nv_or_b32 v245, s8, v245\nv_xor_b32 v244, v244, v245')
    A(f'v_lshl_add_u32 v245, v244, 3, v243\nv_xor_b32 v244, 4, v244\nv_lshl_add_u32 v244, v244, 3, v243\nv_add_u32 v243, {VFR}, v246')
    for tau in range(4):
        for u in range(2):
            i = tau*2 + u
            A(f'ds_read_b64_tr_b16 {v(112+4*i,2)}, v245 offset:{tau*4096+2048*u}\nds_read_b64_tr_b16 {v(114+4*i,2)}, v244 offset:{tau*4096+2048*u+1024}')
            A(f'ds_read_b128 {v(144+4*i,4)}, v243 offset:{tau*2048+u*1024}')
    A(f's_lshl_b32 s8, s{sH1}, 4\ns_add_u32 s8, s8, s{sR1}\ns_lshl_b32 s8, s8, 12\ns_lshl_b32 s9, s{sW}, 11\ns_add_u32 s8, s8, s9\ns_add_u32 s8, s8, {KVP}')
    A(f's_lshl_b32 s10, s{sH1}, 1\ns_add_u32 s10, s10, s{sW}\ns_lshl_b32 s10, s10, 8\ns_lshl_b32 s9, s{sR1}, 3\ns_add_u32 s10, s10, s9\ns_add_u32 s10, s10, {FA}')
    A(f'v_mov_b32 v200, s{TAG+1}\nv_mov_b32 v202, s{TAG+1}')
    for i in range(8):
        A(f's_waitcnt lgkmcnt({min(15, 21-3*i)})')
        A(f'{MFMA} {v(176,16)}, {v(112+4*i,4)}, {v(144+4*i,4)}, {"0" if i == 0 else v(176,16)}')
    for i in range(8): A(f'v_cvt_pk_bf16_f32 v{192+i}, v{176+2*i}, v{177+2*i}')
    A(f'buffer_store_dwordx4 {v(192,4)}, v246, {srd(WS)}, s8 offen sc1\nbuffer_store_dwordx4 {v(196,4)}, v246, {srd(WS)}, s8 offen offset:1024 sc1')
    for l in addn(201, range(192, 196)) + addn(203, range(196, 200)) + wsum([201, 203]): A(l)
    A(flag2(200, 's10')); A(flag2(202, 's10', 128))
    A.stamp('kv_pub')
    A(f's_lshr_b32 s8, s{sLO}, 1\ns_lshl_b32 s8, s8, 7\ns_lshl_b32 s10, s{sW}, 10\ns_mul_i32 s9, s{sW}, 7168\ns_add_u32 s8, s8, s9\ns_cmp_ge_u32 s{sLO}, 14\ns_cselect_b32 s8, 0x4000000, s8')
    A(f'v_lshrrev_b32 v247, 3, v{VL}\nv_bfe_u32 v245, v{VL}, 4, 1\nv_lshlrev_b32 v245, 2, v245\nv_and_b32 v244, 7, v{VL}\nv_xor_b32 v245, v245, v244\nv_mul_u32_u24 v247, 896, v247\nv_lshl_add_u32 v247, v245, 4, v247')
    qpass(A, bg=[dma((10, 2048*i), 247, WO, (8, 14336*i)) for i in range(28)])
    A('s_branch L_kv_j')
    A.label('L_kv_skip')
    prep_store(A, 240)
    qpass(A, 27)

    A.label('L_kv_j')
    A.cend()

def qpass(A, flag_at=None, bg=None):
    WB = 48
    def reads(ks):
        wb = WB + 4*(ks % 6)
        for sec in range(2): A(f'ds_read_b64_tr_b16 {a(wb+2*sec,2)}, v222 offset:{WQL-HIA+1024*ks+256*sec}')
    lanebits(A, hl=222, nb=223, r=224, c=225)
    A(f'v_lshl_add_u32 v222, v222, 3, v224\nv_lshlrev_b32 v222, 6, v222\nv_lshl_add_u32 v222, v223, 5, v222\nv_lshl_add_u32 v222, v225, 3, v222\nv_add_u32 v222, {HIA}, v222')
    for ks in range(4): reads(ks)
    for ks in range(28):
        A(f's_waitcnt lgkmcnt({2*min(3, 27-ks)})')
        A(f'{MFMA} {v(112,16)}, {a(WB+4*(ks%6),4)}, {v(4*ks,4)}, {"0" if ks == 0 else v(112,16)}')
        if ks + 4 < 28: reads(ks+4)
        if bg: A(bg.pop(0))
        if ks == flag_at:
            A('s_waitcnt vmcnt(0)'); A.flag('s2', TAG+5, 244); A.flag('s11', TAG+5, 244)

def wo_items():
    return [dma((sM, 4096*i), 247, WO, (11, 4*7168*i)) for i in range(14)]

def window_q(A):
    A(f's_lshl_b32 s{sM}, s{sW}, 10\ns_mul_i32 s{sW3}, s{sH1}, {196*1024}\ns_add_u32 s{sW3}, s{sW3}, s{sM}\ns_add_u32 s{sW3}, s{sW3}, {W3P}')
    A(f's_lshr_b32 s8, s{sLO}, 1\ns_min_u32 s9, s8, 6\ns_mul_i32 s{sWD}, s9, {224*1024}\ns_mul_i32 s9, s{sW}, {56*1024}\ns_add_u32 s{sWD}, s{sWD}, s9\ns_add_u32 s{sWD}, s{sWD}, {WDP}')
    R = Rec()
    for i in range(8): R(f'v_cvt_pk_bf16_f32 v{128+i}, v{112+2*i}, v{113+2*i}')
    R(f'{MFMA} {v(136,16)}, {a(96,4)}, {v(128,4)}, 0\n{MFMA} {v(136,16)}, {a(100,4)}, {v(132,4)}, {v(136,16)}')
    softmax2(R, 136, 152, 176, 192, 208)
    A.mix(R.l, [], 1)
    p2b_scalars(A)
    A(f'v_lshrrev_b32 v250, 5, v{VL}\nv_and_b32 v251, 31, v{VL}\nv_mul_u32_u24 v251, 896, v251\nv_lshl_add_u32 v251, v250, 3, v251')
    A(f's_mul_i32 s10, s2, 28672\ns_lshl_b32 s15, s11, 1\ns_add_u32 s10, s10, s15')
    for g in range(4): A(f'buffer_load_dwordx2 {v(XR_+4*g,2)}, v251, {srd(X)}, s10 offen offset:{16*g}')
    A(f's_mov_b32 s43, s{sW3}\ns_mov_b32 s{WQKV+1}, 0'); bg_run(A, SLOT[0], 21)
    A.stamp('phiq')

def p2a(A):
    A(f's_lshl_b32 s8, s{sH1}, 2\ns_add_u32 s8, s8, s{sW}\ns_lshl_b32 s8, s8, 7\ns_add_u32 s8, s8, {FA}\nv_lshlrev_b32 v244, 3, v{VL}')
    A(f's_lshl_b32 s9, s{sH1}, 7\ns_add_u32 s9, s9, {FW3}\nv_min_u32 v252, 27, v{VL}\nv_lshlrev_b32 v252, 2, v252')
    A.poll2(16, 244, 's8', TAG+1, 248, 250)
    A.stamp('sa_flag')
    A(f'buffer_load_dword v253, v252, {srd(WS)}, s9 offen sc1')
    A.label('L_sa_retry')
    A(f's_lshl_b32 s8, s{sH1}, 16\ns_add_u32 s8, s8, s{sM}\ns_add_u32 s8, s8, {KVP}')
    tk = []
    for p in range(16):
        A(f'buffer_load_dwordx4 {v(4*p,4)}, v246, {srd(WS)}, s8 offen sc1'); tk.append(A.tok())
        if p < 15: A('s_add_u32 s8, s8, 4096')
    A('s_mov_b32 s10, 0x00003f80\ns_mov_b32 s11, 0x3f800000\nv_mov_b32 v251, v250')
    for i in range(8): A(f'v_mov_b32 v{64+i}, 0')
    for p in range(16):
        A.wait(tk[p])
        for d in range(4): A(f'v_dot2c_f32_bf16 v{64+2*d}, s10, v{4*p+d}\nv_dot2c_f32_bf16 v{65+2*d}, s11, v{4*p+d}')
        for l in addn(251, range(4*p, 4*p+4), False): A(l)
    if OPT.get('fine2'): A.stamp('kvsum')
    fill = [f'v_cvt_pk_bf16_f32 v{72+d}, v{64+2*d}, v{65+2*d}' for d in range(4)] + [f'v_add_u32 v245, {KVS}, v246', f'v_add_u32 v244, s{sM}, v245', 'ds_write_b128 v244, v[72:75]']
    fill += [f's_lshl_b32 s2, s{sR1}, 2', f's_add_u32 s9, s2, s{sW}', 's_lshl_b32 s2, s9, 4', f's_add_u32 s2, s2, s{sH1}', 's_lshl_b32 s2, s2, 11']
    ws = wsum([251])
    for i in range(6):
        A(ws[i]); A(fill[2*i]); A(fill[2*i+1])
    A.verify(251, 'L_sa_retry')
    A(f'v_cmp_ne_u32 vcc, s{TAG+5}, v253\ns_waitcnt lgkmcnt(0)\ns_barrier')
    if OPT.get('fine2'): A.stamp('kvbar')
    A('s_cbranch_vccnz L_fw3n'); bg_emit(A, OPT.get('bgA2', 4)); A.label('L_fw3n')
    for i in range(4): A(f'ds_read_b128 {v(76+4*i,4)}, v245 offset:{1024*i}')
    A(f's_add_u32 s8, s2, {OF}\ns_lshl_b32 s9, s9, 7\ns_lshl_b32 s10, s{sH1}, 3\ns_add_u32 s9, s9, s10\ns_add_u32 s9, s9, {FB}\nv_mov_b32 v248, s{TAG+2}')
    for i in range(4):
        A(f's_waitcnt lgkmcnt({3-i})\n{MFMA} {v(96,16)}, {v(76+4*i,4)}, {v(192+4*i,4)}, {"0" if i == 0 else v(96,16)}')
    A('v_mov_b32 v112, v108\nv_mov_b32 v114, v108\nv_permlane32_swap_b32 v112, v114\nv_add_f32 v114, 0x358637bd, v114\nv_rcp_f32 v114, v114')
    for i in range(8): A(f'v_pk_mul_f32 {v(96+2*i,2)}, {v(96+2*i,2)}, v[114:115] op_sel_hi:[1,0]')
    for i in range(8): A(f'v_cvt_pk_bf16_f32 v{224+i}, v{96+2*i}, v{97+2*i}')
    A(f's_mov_b64 exec, {s(sUP,2)}\nv_mov_b32 v230, 0\nv_mov_b32 v231, 0\ns_mov_b64 exec, -1')
    A(f'buffer_store_dwordx4 v[224:227], v246, {srd(WS)}, s8 offen sc1\nbuffer_store_dwordx4 v[228:231], v246, {srd(WS)}, s8 offen offset:1024 sc1')
    for l in addn(249, range(224, 232)) + wsum([249]): A(l)
    A(flag2(248, 's9'))
    A.stamp('o_pub')
    A(f'v_cmp_ne_u32 vcc, s{TAG+5}, v253\ns_cbranch_vccz L_fw3\ns_lshl_b32 s8, s{sH1}, 7\ns_add_u32 s8, s8, {FW3}')
    A.cbeg(); A.poll(28, 252, 's8', TAG+5, 253); A.cend()
    A.label('L_fw3')
    A(f's_cmp_ge_u32 s{sLO}, 14\ns_cbranch_scc1 L_p2a_alt')
    A.cbeg()
    p2b_scalars(A)
    A(f's_lshr_b32 s10, s{sLO}, 1\ns_lshl_b32 s10, s10, 8\ns_add_u32 s10, s10, {FWD}\nv_min_u32 v248, 55, v{VL}\nv_lshlrev_b32 v248, 2, v248\nbuffer_load_dword v249, v248, {srd(WS)}, s10 offen sc1')
    A(f'v_lshrrev_b32 v250, 5, v{VL}\nv_and_b32 v251, 31, v{VL}\nv_mul_u32_u24 v251, 896, v251\nv_lshl_add_u32 v251, v250, 3, v251\nv_lshlrev_b32 v250, 4, v250')
    for part, dst in MV: modvec_ld(A, part, 11, dst, 250)
    wo_read(A)
    A.cend()
    A.label('L_p2a_alt')
    A.tmv = A.tok()
    bg_emit(A, OPT.get('bgB0', 5))

def p2b_scalars(A):
    A(f's_and_b32 s10, s{sLO}, 1\ns_lshl_b32 s10, s10, 1\ns_lshr_b32 s15, s{sW}, 1\ns_add_u32 s10, s10, s15\ns_lshl_b32 s2, s{sHI}, 2\ns_add_u32 s2, s2, s10')
    A(f's_and_b32 s10, s{sLO}, 14\ns_and_b32 s15, s{sW}, 1\ns_add_u32 s10, s10, s15\ns_lshl_b32 s11, s10, 5')

def wo_read(A):
    lanebits(A, hl=240, nb=241, r=242, c=243)
    A(f'v_lshl_add_u32 v240, v240, 2, v242\nv_lshlrev_b32 v240, 7, v240\nv_lshl_add_u32 v240, v241, 5, v240\nv_lshl_add_u32 v240, v243, 3, v240')
    A(f'v_lshrrev_b32 v242, 1, v242\ns_and_b32 s10, s{sW}, 1\nv_xor_b32 v242, s10, v242\nv_lshl_add_u32 v240, v242, 6, v240')
    A(f's_mul_i32 s10, s10, 28672\nv_add_u32 v241, s10, v240\ns_sub_u32 s10, 28672, s10\nv_add_u32 v240, s10, v240')
    for h in range(16):
        for u in range(2):
            for sec in range(2):
                A(f'ds_read_b64_tr_b16 {v(8*h+4*u+2*sec,2)}, v{241 if h < 8 else 240} offset:{(28*(h&7)+16*u+8*sec)*128}')

def modvec_ld(A, part, ncol_s, dst, voff):
    A(f's_lshl_b32 s10, s{ncol_s}, 2\ns_add_u32 s10, s10, {MODG+part*1792}')
    for g in range(4): A(f'buffer_load_dwordx4 {v(dst+4*g,4)}, v{voff}, {srd(WS)}, s10 offen offset:{32*g} sc1')

def modvecs(A, parts, ncol_s, voff, tmp, lab):
    A.label(lab)
    A(f'v_mov_b32 v{tmp}, 0')
    for part, dst in parts:
        for g in range(8): A(f'v_xor_b32 v{dst+2*g+1}, s{TAG}, v{dst+2*g+1}')
        for g in range(0, 8, 2): A(f'v_or3_b32 v{tmp}, v{tmp}, v{dst+2*g+1}, v{dst+2*g+3}')
    A(f'v_cmp_ne_u32 vcc, 0, v{tmp}')
    A.spin_check(lab + 'x')
    A(f's_cbranch_vccz {lab}x')
    for part, dst in parts: modvec_ld(A, part, ncol_s, dst, voff)
    A(f's_waitcnt vmcnt(0)\ns_branch {lab}')
    A.label(lab + 'x')

def aext(A):
    A(f's_lshl_b32 s8, s{sHI}, 1\ns_add_u32 s8, s8, s{sLO}\ns_sub_u32 s8, s8, 14\ns_lshl_b32 s8, s8, 2\ns_add_u32 s11, s8, s{sW}\ns_cmp_ge_u32 s11, 112\ns_cbranch_scc1 L_ax_done')
    A(f's_mul_i32 s8, s11, 9363\ns_lshr_b32 s8, s8, 16\ns_lshl_b32 s8, s8, 7\ns_add_u32 s8, s8, {FW3}\nv_lshlrev_b32 v244, 2, v{VL}')
    A.poll(28, 244, 's8', TAG+5, 245)
    A(f's_mul_i32 s8, s11, 28672\ns_add_u32 s8, s8, {W3P}')
    for ks in range(28): A(f'buffer_load_dwordx4 {v(4*ks,4)}, v246, {srd(WS)}, s8 offen offset:{1024*(ks&3)} sc1' + ('\ns_add_u32 s8, s8, 4096' if ks & 3 == 3 else ''))
    A(f'v_lshlrev_b32 v244, 3, v{VL}\nv_and_b32 v240, 0x39, v{VL}\nv_bfe_u32 v241, v{VL}, 1, 1\nv_lshl_or_b32 v240, v241, 2, v240\nv_bfe_u32 v241, v{VL}, 2, 1\nv_lshl_or_b32 v240, v241, 1, v240')
    A(f's_lshl_b32 s9, s{sM}, 2\nv_lshl_add_u32 v245, v240, 2, s9\ns_mov_b32 s8, {MODG+3*1792}')
    A.label('L_ax_p')
    for i in range(4):
        A(f'buffer_load_dwordx2 {v(112+2*i,2)}, v244, {srd(WS)}, s8 offen offset:{1792+512*i} sc1\nbuffer_load_dwordx2 {v(120+2*i,2)}, v244, {srd(WS)}, s8 offen offset:{512*i} sc1')
    A('s_waitcnt vmcnt(0)\nv_mov_b32 v128, 0')
    for i in range(8): A(f'v_xor_b32 v{113+2*i}, s{TAG}, v{113+2*i}\nv_or_b32 v128, v128, v{113+2*i}')
    A('v_cmp_ne_u32 vcc, 0, v128')
    A.spin_check('L_ax_px')
    A('s_cbranch_vccnz L_ax_p')
    A.label('L_ax_px')
    for i in range(3): A(f'ds_write_b32 v245, v{112+2*i} offset:{256*i}\nds_write_b32 v245, v{120+2*i} offset:{896+256*i}')
    A(f's_mov_b32 exec_hi, 0\nds_write_b32 v245, v118 offset:768\nds_write_b32 v245, v126 offset:{896+768}\ns_mov_b64 exec, -1')
    A(f'v_and_b32 v240, 1, v{VL}\nv_mul_u32_u24 v240, 896, v240\nv_lshrrev_b32 v241, 5, v{VL}\nv_lshl_add_u32 v240, v241, 4, v240\nv_add_u32 v240, s9, v240\ns_waitcnt lgkmcnt(0)')
    for half in range(2):
        for k in range(14): A(f'ds_read_b128 {v(128+4*k,4)}, v240 offset:{32*(half*14+k)}')
        A('s_waitcnt lgkmcnt(0)')
        for k in range(14): A(f'{MFMA} {v(112,16)}, {v(4*(half*14+k),4)}, {v(128+4*k,4)}, {"0" if half == 0 and k == 0 else v(112,16)}')
    A(f'v_and_b32 v240, 1, v{VL}\nv_lshlrev_b32 v240, 7, v240\nv_lshl_add_u32 v240, v241, 4, v240\nv_add_u32 v240, s9, v240')
    A('s_mov_b32 exec_lo, 3\ns_mov_b32 exec_hi, 3')
    for g in range(4): A(f'ds_write_b128 v240, {v(112+4*g,4)} offset:{2048+32*g}')
    A(f's_mov_b64 exec, -1\nv_and_b32 v240, 31, v{VL}\nv_lshl_add_u32 v240, v240, 2, s9\ns_waitcnt lgkmcnt(0)\nds_read_b32 v130, v240 offset:2048\nds_read_b32 v131, v240 offset:2176\ns_waitcnt lgkmcnt(0)')
    for x_, o in ((130, 132), (131, 133)):
        A(f'v_cvt_pk_bf16_f32 v136, v{x_}, v{x_}\nv_and_b32 v136, s{sMASK}, v136\nv_sub_f32 v137, v{x_}, v136\nv_cvt_pk_bf16_f32 v{o}, v136, v137')
    A(f'v_mov_b32 v134, 0\nv_mov_b32 v135, s{TAG+6}\ns_mov_b64 exec, {s(sUP,2)}\nv_mov_b32 v132, 0\nv_mov_b32 v133, 0\ns_mov_b64 exec, -1')
    A(f's_lshl_b32 s8, s11, 10\ns_add_u32 s8, s8, {AEXT}\nbuffer_store_dwordx4 v[132:135], v246, {srd(WS)}, s8 offen sc1')
    A.label('L_ax_done')

MV = [(2, 144), (4, 160), (5, 192)]
GA, C1B, XR_, GB, X1K = 144, 160, 176, 224, 232

def p2b(A):
    A('s_waitcnt lgkmcnt(0)\ns_barrier')
    A(f's_cmp_ge_u32 s{sLO}, 14\ns_cbranch_scc1 L_p2b_alt')
    A.cbeg()
    A(f'v_lshlrev_b32 v244, 3, v{VL}')
    A(f's_lshl_b32 s8, s2, 7\ns_and_b32 s9, s{sW}, 1\ns_lshl_b32 s10, s9, 6\ns_add_u32 s8, s8, s10\ns_add_u32 s8, s8, {FB}')
    A.poll2(8, 244, 's8', TAG+2, 252, 243, bg=OPT.get('bgB', 2))
    A.stamp('sb_flag')
    A.label('L_sb_retry')
    A(f's_and_b32 s9, s{sW}, 1\ns_lshl_b32 s8, s2, 15\ns_lshl_b32 s9, s9, 14\ns_add_u32 s8, s8, s9\ns_add_u32 s8, s8, {OF}\ns_lshl_b32 s9, s{sW}, 14')
    for p in range(8): A(dma((9, 1024*p), 246, WS, (8, 1024*p), 'sc1'))
    if not getattr(A, 'done_mv', 0):
        A('s_cmp_eq_u32 s14x, 77\ns_cbranch_scc1 L_mv_done'.replace('s14x', f's{WQKV+1}'))
    modvecs(A, MV, 11, 250, 242, 'L_mv')
    for b0 in (GA, C1B):
        for q in range(8): A(f'v_and_b32 v{b0+2*q+1}, s{sMASK}, v{b0+2*q}\nv_lshlrev_b32 v{b0+2*q}, 16, v{b0+2*q}')
    for q in range(8): A(f'v_mov_b32 v{GB+q}, v{192+2*q}')
    for g in range(4):
        b = XR_ + 4*g
        A(f'v_and_b32 v{b+3}, s{sMASK}, v{b+1}\nv_lshlrev_b32 v{b+2}, 16, v{b+1}\nv_and_b32 v{b+1}, s{sMASK}, v{b}\nv_lshlrev_b32 v{b}, 16, v{b}')
    A(f'v_cmp_ne_u32 vcc, s{TAG+5}, v249\ns_cbranch_vccz L_fwd\ns_lshr_b32 s8, s{sLO}, 1\ns_lshl_b32 s8, s8, 8\ns_add_u32 s8, s8, {FWD}')
    A.poll(56, 248, 's8', TAG+5, 249)
    A.label('L_fwd')
    if OPT.get('fine2'): A.stamp('prepoll')
    A(f's_mov_b32 s{WQKV+1}, 77')
    A.label('L_mv_done')
    nb = 0
    A(f's_and_b32 s9, s{sW}, 1\ns_lshl_b32 s8, s2, 15\ns_lshl_b32 s9, s9, 14\ns_add_u32 s8, s8, s9\ns_add_u32 s8, s8, {OF}\ns_lshl_b32 s9, s{sW}, 14\nv_mov_b32 v251, v243')
    for p in range(8, 16): A(dma((9, 1024*p), 246, WS, (8, 1024*p), 'sc1'))
    A(f'v_add_u32 v247, s9, v246\ns_xor_b32 s8, s9, 16384\nv_add_u32 v245, s8, v246')
    def rd(k): return f'ds_read_b128 {v(192+4*(k%8),4)}, v{247 if k < 16 else 245} offset:{1024*(k&15)}'
    bg = wd_items(nb, nb + OPT.get('wdM', 0)); nb += OPT.get('wdM', 0)
    issued = 0
    for k in range(32):
        if k == 12 and OPT.get('fine2'): A.stamp('k12')
        if k == 12: A('s_barrier')
        want = min(k + 4, 31)
        while issued <= want:
            if issued < 16: A(f's_waitcnt vmcnt({15-issued})')
            A(rd(issued)); issued += 1
        A(f's_waitcnt lgkmcnt({issued-1-k + (1 if k == 25 else 0)})\n{MFMA} {v(128,16)}, {v(4*k,4)}, {v(192+4*(k%8),4)}, {"0" if k == 0 else v(128,16)}')
        if k < 16:
            for l in addn(251, range(192+4*(k%8), 196+4*(k%8)), False): A(l)
        if 17 <= k < 23: A(wsum([251])[k-17])
        if k == 24: A(f'v_readlane_b32 s8, v251, 63\nv_mov_b32 v253, {KVS}\nv_add_u32 v242, s{sM}, v253\nv_mov_b32 v251, s8\nds_write_b32 v242, v251')
        if k >= 13 and k % 3 == 1:
            if OPT.get('bgM', 1): bg_emit(A)
            elif bg: A(bg.pop(0))
    assert not bg
    if OPT.get('fine2'): A.stamp('p2bmm')
    A('s_barrier')
    for i in range(4): A(f'ds_read_b32 v{240+(i&1)+8*(i>>1)}, v253 offset:{1024*i}')
    for i in range(8): A(f'v_pk_fma_f32 {v(128+2*i,2)}, {v(128+2*i,2)}, {v(GA+2*i,2)}, {v(XR_+2*i,2)}')
    for i in range(8): A(f'v_cvt_pk_bf16_f32 v{X1K+i}, v{128+2*i}, v{129+2*i}')
    A('v_mov_b32 v208, 0\nv_mov_b32 v210, 0')
    for i in range(8): A(f'v_lshlrev_b32 v{128+2*i}, 16, v{X1K+i}\nv_and_b32 v{129+2*i}, s{sMASK}, v{X1K+i}')
    for i in range(8): A(f'v_pk_mul_f32 {v(128+2*i,2)}, {v(128+2*i,2)}, {v(C1B+2*i,2)}')
    for i in range(8): A(f'v_cvt_pk_bf16_f32 v{200+i}, v{128+2*i}, v{129+2*i}')
    A(f's_lshr_b32 s8, s11, 5\ns_mul_i32 s10, s2, 28\ns_lshl_b32 s9, s8, 1\ns_add_u32 s10, s10, s9\ns_lshl_b32 s10, s10, 10\ns_add_u32 s10, s10, {YF}')
    A('s_waitcnt lgkmcnt(0)\nv_or3_b32 v240, v240, v241, v248\nv_or_b32 v240, v240, v249\nv_readfirstlane_b32 s9, v240\ns_cmp_eq_u32 s9, 0\ns_cbranch_scc1 L_sb_ok')
    A.spin_check('L_sb_ok')
    A('s_barrier\ns_branch L_sb_retry')
    A.label('L_sb_ok')
    A(f'buffer_store_dwordx4 v[200:203], v246, {srd(WS)}, s10 offen sc1\nbuffer_store_dwordx4 v[204:207], v246, {srd(WS)}, s10 offen offset:1024 sc1')
    for i in range(8): A(f'v_dot2c_f32_bf16 v208, s{sONES}, v{X1K+i}\nv_dot2c_f32_bf16 v210, v{X1K+i}, v{X1K+i}')
    xhalf(A, 208, 210, 'v_add_f32')
    A(f'v_mov_b32 v209, v210\ns_lshl_b32 s9, s2, 4\ns_add_u32 s9, s9, s8\ns_lshl_b32 s9, s9, 8\ns_add_u32 s9, s9, {STAT}\nv_lshlrev_b32 v244, 3, v{VL}')
    for l in addn(249, range(200, 208)): A(l)
    A(f'v_mov_b32 v248, s{TAG+3}\ns_mov_b32 exec_hi, 0\nbuffer_store_dwordx2 v[208:209], v244, {srd(WS)}, s9 offen sc1\nv_add3_u32 v249, v249, v208, v209\ns_mov_b64 exec, -1')
    A(f's_lshl_b32 s8, s8, 3\ns_lshl_b32 s9, s2, 7\ns_add_u32 s8, s8, s9\ns_add_u32 s8, s8, {FC}')
    for l in wsum([249]): A(l)
    A(flag2(248, 's8'))
    A.stamp('y_pub')
    A(f's_or_b32 s8, s{sHI}, s{sLO}\ns_or_b32 s8, s8, s{sW}\ns_cmp_lg_u32 s8, 0\ns_cbranch_scc1 L_p2b_j\ns_add_u32 s8, s{sE}, 1\nv_mov_b32 v244, s8\ns_mov_b64 exec, 1\nbuffer_store_dword v244, v254, {srd(WS)}, 0 offen sc1\ns_mov_b64 exec, -1')
    A('s_branch L_p2b_j')
    A.label('L_p2b_alt')
    aext(A)
    A(f's_barrier\ns_barrier')
    A.label('L_p2b_j')
    A.cend()
    A.nwd = nb

def aext_ld(A):
    A(f's_mul_i32 s11, s{sH1}, 7168\ns_add_u32 s11, s11, {AEXT}\ns_add_u32 s15, s11, 4096')
    for i in range(7): A(f'buffer_load_dwordx4 {v(192+4*i,4)}, v246, {srd(WS)}, s{11 if i < 4 else 15} offen offset:{1024*(i&3)} sc1')

def p3(A):
    AX = 224
    bg_drain(A); bg_run(A, SLOT[3], 14); bg_emit(A, OPT.get('bgC0', 3))
    A(f'v_add_u32 v240, 65536, v246\nv_add_u32 v241, 122880, v246')
    A(f's_lshl_b32 s14, s{sR1}, 2\ns_add_u32 s14, s14, s{sW}\ns_lshl_b32 s8, s14, 7\ns_add_u32 s8, s8, {FC}\nv_lshlrev_b32 v244, 3, v{VL}' .replace('s14', 's11'))
    A(f'v_and_b32 v242, 31, v{VL}\nv_lshrrev_b32 v243, 5, v{VL}\nv_lshlrev_b32 v242, 3, v242\nv_mul_u32_u24 v243, 1792, v243\nv_add_u32 v242, v242, v243')
    nb = A.nwd
    for l in wd_items(nb, nb + OPT.get('wdC', 0)): A(l)
    nb += OPT.get('wdC', 0)
    A.stamp('prepollc') if OPT.get('fine2') else None
    A.poll2(14, 244, 's8', TAG+3, 252, 250, bg=OPT.get('bgC', 3))
    A.stamp('sc_flag')
    A(f's_mov_b32 s41x, s11'.replace('s41x', f's{WQKV}'))
    A('s_barrier')
    A.label('L_sc_retry')
    A(f's_mov_b32 s11, s{WQKV}\nv_mov_b32 v251, v250')
    A(f's_mul_i32 s13, s11, 28672\ns_add_u32 s13, s13, {YF}')
    ty = []
    def yld():
        ks = len(ty)
        if ks & 3 == 0 and ks: A('s_add_u32 s13, s13, 4096')
        A(f'buffer_load_dwordx4 {v(4*ks,4)}, v246, {srd(WS)}, s13 offen offset:{1024*(ks&3)} sc1'); ty.append(A.tok())
    for _ in range(OPT.get('yd', 8)): yld()
    ST = 194
    R = Rec()
    for l in addn(251, range(ST, ST+14), False): R(l)
    for i in range(1, 7): R(f'v_add_f32 v{ST}, v{ST}, v{ST+2*i}\nv_add_f32 v{ST+1}, v{ST+1}, v{ST+1+2*i}')
    R(f'v_mov_b32 v{ST+2}, v{ST+1}')
    xhalf(R, ST, ST+2, 'v_add_f32'); lnstats(R, ST, ST+2, ST+1)
    R(f'v_mul_f32 v248, v{ST+2}, v{ST+2}\nv_xor_b32 v{ST}, 0x80000000, v{ST}\ns_mov_b32 s11, 0x07060706\nv_perm_b32 v220, v{ST}, v{ST}, s11\nv_perm_b32 v221, v{ST+1}, v{ST+1}, s11\nv_mov_b32 v222, 0\nv_mov_b32 v223, 0')
    statv = R.l
    A(f's_lshl_b32 s{WQKV+1}, s11, 12\ns_add_u32 s{WQKV+1}, s{WQKV+1}, {STAT}')
    A(f's_mul_i32 s8, s11, 112\ns_mul_i32 s9, s{sH1}, 7\ns_add_u32 s8, s8, s9\ns_lshl_b32 s8, s8, 10\ns_add_u32 s8, s8, {HH}\ns_add_u32 s9, s8, 4096')
    A(f's_lshl_b32 s10, s{sR1}, 2\ns_lshr_b32 s11, s{sH1}, 2\ns_add_u32 s10, s10, s11\ns_lshl_b32 s10, s10, 7\ns_and_b32 s11, s{sH1}, 3\ns_lshl_b32 s11, s11, 2\ns_add_u32 s11, s11, s{sW}\ns_lshl_b32 s11, s11, 3\ns_add_u32 s10, s10, s11\ns_add_u32 s10, s10, {FD}\nv_mov_b32 v252, s{TAG+4}')
    groups = {2: 0, 4: 1, 6: 2}
    ACC = [112, 128, 144, 192]; WBUF = 160
    seq = [(ks, i) for ks in range(28) for i in range(3)] + [(ks, i) for i in range(3, 7) for ks in range(28)]
    acc = lambda i: ACC[i % 4]
    tslot = [0, 1, 2, 3, 4, 0, 1]
    def rd(n):
        ks, i = seq[n]; base = SLOT[tslot[i]]
        reg, off = (246, base) if base < 65536 else ((240, base - 65536) if base < 122880 else (241, base - 122880))
        return f'ds_read_b128 {v(WBUF+4*(n%8),4)}, v{reg} offset:{off+1024*ks}'
    def epi(i):
        b = acc(i)
        l = [f'v_mul_f32 v{b+q}, v{b+q}, v{b+8+q}' for q in range(8)] + [f'v_mul_f32 v{b+q}, v248, v{b+q}' for q in range(8)]
        l += [f'v_cvt_pk_bf16_f32 v{b+8+q}, v{b+2*q}, v{b+2*q+1}' for q in range(4)]
        l += [f'buffer_store_dwordx4 {v(b+8,4)}, v246, {srd(WS)}, s{8 if i < 4 else 9} offen offset:{1024*(i&3)} sc1']
        l += addn(253, range(b+8, b+12), i in (0, 3, 5))
        if i in groups:
            for x in wsum([253]): l += [x, '', '', ''] if i < 6 else [x]
            l += [f's_add_u32 s11, s10, {8192*groups[i]}\n' + flag2(252, 's11')]
        return l
    ext = lambda i: f'{MFMA} {v(acc(i),16)}, {v(192+4*i,4) if i < 3 else a(AX+4*i,4)}, v[220:223], {v(acc(i),16)}'
    PD = 6; N = len(seq)
    nbg34 = OPT.get('bgC0', 3)
    issued = 0; fg = []; bgq = []; pend = []
    groups = {2: 0, 4: 1, 6: 2}
    wdrest = wd_items(nb, 56)
    for n in range(N):
        ks, i = seq[n]
        if OPT.get('fine3') and n in (0, 3, 42, 112, 140, 168): A.stamp(f'n{n}')
        if n == 84:
            A.verify(251, 'L_sc_retry', 11)
            if OPT.get('fine3'): A.stamp('n84')
            A.wait(A.tae)
            A.label('L_ae')
            A('v_mov_b32 v249, 0')
            for q in range(7): A(f'v_xor_b32 v{192+4*q+3}, s{TAG+6}, v{192+4*q+3}\nv_or_b32 v249, v249, v{192+4*q+3}')
            A('v_cmp_ne_u32 vcc, 0, v249')
            A.spin_check('L_aex')
            A('s_cbranch_vccz L_aex')
            A.cbeg(); aext_ld(A); A.cend()
            A('s_waitcnt vmcnt(0)\ns_branch L_ae')
            A.label('L_aex')
            if OPT.get('fine3'): A.stamp('aex')
            for q in range(3):
                A(ext(q))
                for z in range(6 if q < 2 else 4): A(f'v_accvgpr_write_b32 a{AX+12+6*q+z}, v{204+6*q+z}')
            A.wait(A.tw34); A('s_barrier')
            bgq += w3_tile(5, 0) + w3_tile(6, 1)
            A.stamp('t012')
            fg = epi(0) + epi(1) + epi(2)
        if n == 84 + 56:
            A.wait(A.tw56); A('s_barrier')
        if n >= 84 and ks == 0 and i > 3: fg = fg + epi(i-1)
        if n >= 84 and ks == 0:
            assert not any(f'v{acc(i)+q},' in x or f'v[{acc(i)+8}:' in x for x in fg for q in range(16)), (i, fg)
        lim = 84 if n < 84 else (84 + 56 if n < 84 + 56 else N)
        if n < 84 and i == 0: A.wait(ty[ks])
        if issued <= n:
            while issued < n + PD: A(rd(issued)); issued += 1
        A(f's_waitcnt lgkmcnt({issued-1-n})')
        A(f'{MFMA} {v(acc(i),16)}, {v(WBUF+4*(n%8),4)}, {v(4*ks,4)}, {v(acc(i),16) if ks else 0}')
        if n >= 84 and ks == 27: A(ext(i))
        if n == 41:
            for q in range(7): A(f'buffer_load_dwordx2 {v(ST+2*q,2)}, v242, {srd(WS)}, s{WQKV+1} offen offset:{256*q} sc1')
            tst = A.tok()
        if n == 56: A.wait(tst); fg = list(statv)
        if n == 72:
            assert not fg
            aext_ld(A); A.tae = A.tok()
        if n == 83:
            for l in wsum([251]): A(l)
        while issued < min(n + PD + 1, lim): A(rd(issued)); issued += 1
        if n + 1 == lim and lim < N: pass
        if n < 84 and i == 1:
            for l in addn(251, range(4*ks, 4*ks+4), False): A(l)
        for _ in range(OPT.get('fgr', 3)):
            if fg and not (n >= 84 and ks < 2):
                l = fg.pop(0); A(l)
        if n < 84 and len(ty) < 28:
            if n % 2 == 0: yld()
        elif n < 84 and nbg34 < 14:
            if n % 2 == 0:
                bg_emit(A); nbg34 += 1; A.tw34 = A.tok()
        elif bgq:
            if n % 2 == 0:
                A(bgq.pop(0))
                if not bgq: A.tw56 = A.tok()
        elif wdrest and n % OPT.get('wdE', 2) == 0: A(wdrest.pop(0))
        if pend and n >= pend[0][0]:
            _, g, tk = pend.pop(0); A.wait(tk); A(f's_add_u32 s11, s10, {8192*g}'); A.flag('s11', TAG+4, 244)
        if n == 84 + 55:
            pass
    A.stamp('p3_gemm')
    for l in wdrest: A(l)
    for l in fg + epi(6): A(l)
    assert not pend
    A.thh = A.tok()

def p4(A):
    A(f's_cmp_ge_u32 s{sLO}, 14\ns_cbranch_scc1 L_p4_alt')
    A.cbeg()
    A(f's_and_b32 s8, s{sLO}, 1\ns_lshl_b32 s8, s8, 1\ns_lshl_b32 s1, s{sHI}, 2\ns_add_u32 s1, s1, s8')
    A(f'v_lshrrev_b32 v243, 1, v{VL}\nv_lshlrev_b32 v243, 5, v243\nv_and_b32 v245, 1, v{VL}\nv_add_u32 v245, s8, v245\nv_lshl_add_u32 v243, v245, 3, v243')
    A(f's_mul_i32 s0, s1, 112\ns_mul_i32 s9, s{sW}, 28\ns_add_u32 s0, s0, s9\ns_lshl_b32 s0, s0, 10\ns_add_u32 s0, s0, {HH}')
    A(f's_lshl_b32 s12, s{sHI}, 2\ns_add_u32 s12, s12, s{sW}\ns_lshl_b32 s12, s12, 7\ns_add_u32 s12, s12, {FD}')
    grp = [(0, 1, 2), (3, 4), (5, 6)]
    order = []
    for g in range(3): order.append([(7*mm + i, rho) for mm in range(4) for i in grp[g] for rho in range(2)])
    NB = 36; HB = 64
    A.c('group 0 flags were sent long ago; own last group is flagged once its store has drained')
    ld_n = 0; vm_local = 0
    flat = order[0] + order[1] + order[2]
    def ld(n):
        fk, rho = flat[n]
        A(f's_add_u32 s15, s0, {(rho*112+fk)*1024}\nbuffer_load_dwordx4 {v(HB+4*(n%NB),4)}, v246, {srd(WS)}, s15 offen sc1')
    def mf(n):
        fk, rho = flat[n]
        for nu in range(2):
            d = v(16*(2*rho+nu), 16)
            A(f'{MFMA} {d}, {a(8*fk+4*nu,4)}, {v(HB+4*(n%NB),4)}, {"0" if n < 2 else d}')
    A.label('L_sd_retry')
    A.poll2(8, 243, 's12', TAG+4, 248, 250)
    A(f's_add_u32 s11, s12, 8192')
    A.poll2(8, 243, 's11', TAG+4, 248, 250, first=False)
    A.stamp('sd01')
    done = 0; loaded = 0
    D4 = OPT.get('d4', 9)
    while loaded < D4: ld(loaded); loaded += 1
    while done < 56:
        if loaded == 40 and done == 40 - D4 + 1:
            A(f's_add_u32 s11, s12, 16384')
            A.poll2(8, 243, 's11', TAG+4, 248, 250, first=False)
            A.stamp('sd2')
            landed = 40
            while loaded < 40 + D4: ld(loaded); loaded += 1
        if not (loaded > 40 and done < 40): A(f's_waitcnt vmcnt({loaded-1-done})')
        mf(done)
        for l in addn(250, range(HB+4*(done%NB), HB+4*(done%NB)+4), False): A(l)
        done += 1
        if loaded < 56 and loaded != 40 and loaded < done + D4 + (0 if loaded < 40 else 8): ld(loaded); loaded += 1
    A.stamp('p4_gemm')
    A(f's_lshl_b32 s8, s{sW}, 12\nv_add_u32 v244, s8, v246\ns_lshl_b32 s8, s{sW}, 14\nv_add_u32 v245, s8, v246\ns_barrier')
    ws = wsum([250])
    for tau in range(4):
        for q in range(4):
            A(f'ds_write_b128 v244, {v(16*tau+4*q,4)} offset:{16384*tau+1024*q}')
            if 2*len(ws) > 12 - (4*tau+q) * 1 and (4*tau+q) % 2 == 0 and ws: A(ws.pop(0))
    assert not ws
    A(f'v_readlane_b32 s8, v250, 63\nv_mov_b32 v248, {KVS}\ns_lshl_b32 s9, s{sW}, 10\nv_add_u32 v249, s9, v248\nv_mov_b32 v250, s8\nds_write_b32 v249, v250')
    for i in range(8): A(f'v_lshlrev_b32 v{128+2*i}, 16, v{X1K+i}\nv_and_b32 v{129+2*i}, s{sMASK}, v{X1K+i}\nv_lshlrev_b32 v{144+2*i}, 16, v{GB+i}\nv_and_b32 v{145+2*i}, s{sMASK}, v{GB+i}')
    A(f'v_and_b32 v242, 31, v{VL}\nv_mul_u32_u24 v242, 896, v242\nv_lshrrev_b32 v241, 5, v{VL}\nv_lshl_add_u32 v242, v241, 4, v242')
    A(f's_mul_i32 s8, s2, 28672\ns_and_b32 s9, s{sLO}, 14\ns_and_b32 s10, s{sW}, 1\ns_add_u32 s9, s9, s10\ns_lshl_b32 s9, s9, 6\ns_add_u32 s8, s8, s9')
    A('s_waitcnt lgkmcnt(0)\ns_barrier')
    for i in range(4): A(f'ds_read_b32 v{160+i}, v248 offset:{1024*i}')
    for sw in range(4):
        for q in range(4): A(f'ds_read_b128 {v(64+16*sw+4*q,4)}, v245 offset:{4096*sw+1024*q}')
    A('s_waitcnt lgkmcnt(8)\nv_or3_b32 v160, v160, v161, v162\nv_or_b32 v160, v160, v163\nv_readfirstlane_b32 s9, v160\ns_cmp_eq_u32 s9, 0\ns_cbranch_scc1 L_sd_ok')
    A.spin_check('L_sd_ok')
    A('s_waitcnt lgkmcnt(0)\ns_branch L_sd_retry')
    A.label('L_sd_ok')
    for i in range(8): A(f'v_pk_add_f32 {v(64+2*i,2)}, {v(64+2*i,2)}, {v(80+2*i,2)}')
    A('s_waitcnt lgkmcnt(0)')
    for i in range(8): A(f'v_pk_add_f32 {v(96+2*i,2)}, {v(96+2*i,2)}, {v(112+2*i,2)}')
    for i in range(8): A(f'v_pk_add_f32 {v(64+2*i,2)}, {v(64+2*i,2)}, {v(96+2*i,2)}')
    for i in range(8): A(f'v_pk_fma_f32 {v(64+2*i,2)}, {v(64+2*i,2)}, {v(144+2*i,2)}, {v(128+2*i,2)}')
    for i in range(8): A(f'v_cvt_pk_bf16_f32 v{80+i}, v{64+2*i}, v{65+2*i}')
    for pr in range(2):
        b = 80 + 4*pr
        A(f'v_permlane32_swap_b32 v{b}, v{b+2}\nv_permlane32_swap_b32 v{b+1}, v{b+3}')
    for pr in range(2): A(f'buffer_store_dwordx4 {v(80+4*pr,4)}, v242, {srd(OUT)}, s8 offen offset:{32*pr}')
    A.cend()
    A.label('L_p4_alt')
    A.label('L_done')
    A.stamp('end')

def epilogue(A):
    if A.stamps:
        A(f's_lshl_b32 s8, s{sHI}, 4\ns_add_u32 s8, s8, s{sLO}\ns_lshl_b32 s8, s8, 2\ns_add_u32 s8, s8, s{sW}\ns_lshl_b32 s8, s8, 7\ns_add_u32 s8, s8, {DBGA}')
        A('v_mov_b32 v1, 0')
        for i in range(A.nst): A(f'v_writelane_b32 v1, s{sST+i}, {i}')
        A(f'v_lshlrev_b32 v2, 2, v{VL}\ns_mov_b32 exec_hi, 0\nbuffer_store_dword v1, v2, {srd(WS)}, s8 offen\ns_waitcnt vmcnt(0)')
    A.label('L_exit')
    A('s_endpgm')

def build(stop=99, stamps=0):
    A = G(stamps); A.begin_kernel(KNAME)
    prologue(A); phase0_1(A); p1_kv(A); window_q(A)
    for _ in range(1):
        p2a(A)
        if stop == 2: break
        p2b(A)
        if stop == 3: break
        p3(A); p4(A)
    epilogue(A)
    A.end_kernel(KNAME, (256,1,1), (256,1,1), 163840, 512, 256)
    rep = []
    A.L = hazard.fix(A.L, rep)
    if OPT.get('align', 1):
        A.L, st = align.fix(A.L, OPT.get('minrun', 5)); print('align widened/nops/left', st)
    return A.text(single=True), A.stnames, rep[0]

if __name__ == '__main__':
    stop = int(sys.argv[2]) if len(sys.argv) > 2 else 99
    stamps = int(sys.argv[3]) if len(sys.argv) > 3 else 0
    for kv in sys.argv[4:]:
        k_, v_ = kv.split('='); OPT[k_] = int(v_)
    t, names, nops = build(stop, stamps)
    open(sys.argv[1], 'w').write(t)
    open(sys.argv[1] + '.stamps', 'w').write(' '.join(names))
    print('auto nop states', nops, 'lines', t.count('\n'))
```
